```python
import torch

def _softmax(x, axis=-1):
    return torch.softmax(x, dim=axis)
def _gelu(x):
    return torch.nn.functional.gelu(x, approximate="tanh")
def _silu(x):
    return torch.nn.functional.silu(x)
def _sigmoid(x):
    return torch.sigmoid(x)
def _layernorm(x, axis=-1, eps=1e-5):
    m = x.mean(dim=axis, keepdim=True)
    v = x.var(dim=axis, keepdim=True, unbiased=False)
    return (x - m) / torch.sqrt(v + eps)
def _scatter_add(tgt, idx, src, axis=0):
    return tgt.clone().index_add_(axis, idx, src)
def _segment_sum(src, seg, n):
    out = torch.zeros((n,) + src.shape[1:], dtype=src.dtype)
    return out.index_add_(0, seg, src)
def _pad(x, pw):
    flat = tuple(v for pair in reversed(pw) for v in pair)
    return torch.nn.functional.pad(x, flat)

kernel_name = 'recurrent_scan__spectral_gfnet__dense_activation_gelu__prompt'

def setup_inputs():

    _w = (lambda a: (lambda t: t.to(torch.bfloat16) if t.is_floating_point() else t)(torch.as_tensor(a)))
    def _A_setup():
        B, S, D = 1, 2048, 640
        Df = D // 2 + 1
        return {
            "x": _w((lambda *s: torch.randn(*s, dtype=torch.bfloat16) * 0.05)(B, S, D)),
            "w_r": _w((lambda *s: torch.randn(*s, dtype=torch.bfloat16) * 3.2)(S, Df) * 0.02),
            "w_i": _w((lambda *s: torch.randn(*s, dtype=torch.bfloat16) * 3.2)(S, Df) * 0.02),
        }
    _A_in = _A_setup()

    def _B_setup():
        B, S, D, F = 1, 2048, 640, 1728
        return {
            "x": _w((lambda *s: torch.randn(*s, dtype=torch.bfloat16) * 0.05)(B, S, D)),
            "w1": _w((lambda *s: torch.randn(*s, dtype=torch.bfloat16) * 3.2)(D, F) * (D ** -0.5)),
            "b1": _w((lambda *s: torch.randn(*s, dtype=torch.bfloat16) * 3.2)(F) * 0.01),
            "w2": _w((lambda *s: torch.randn(*s, dtype=torch.bfloat16) * 0.4)(F, D) * (F ** -0.5)),
            "b2": _w((lambda *s: torch.randn(*s, dtype=torch.bfloat16) * 0.4)(D) * 0.01),
        }
    _B_in = _B_setup()

    return {
        "A_x": _A_in["x"],
        "A_w_r": _A_in["w_r"],
        "A_w_i": _A_in["w_i"],
        "B_x": _B_in["x"],
        "B_w1": _B_in["w1"],
        "B_b1": _B_in["b1"],
        "B_w2": _B_in["w2"],
        "B_b2": _B_in["b2"],
    }

def reference(A_x, A_w_r, A_w_i, B_x, B_w1, B_b1, B_w2, B_b2):
    def _A_ref(x, w_r, w_i):
        B, S, D = x.shape
        X = (lambda x, axes=(-2,-1): torch.fft.rfft2(x.float(), dim=axes))(x, axes=(-2, -1))
        W = w_r + 1j * w_i
        X = X * W
        y = (lambda x, s, axes=(-2,-1): torch.fft.irfft2(x, s=s, dim=axes).to(torch.bfloat16))(X, (S, D), axes=(-2, -1))
        return y

    def _B_ref(x, w1, b1, w2, b2):
        h = torch.einsum("bsd,df->bsf", x, w1) + b1
        h = _gelu(h)
        return torch.einsum("bsf,fd->bsd", h, w2) + b2

    x = A_x
    xn = _layernorm(x, axis=-1)
    s = _A_ref(xn, A_w_r, A_w_i)
    g = _silu(_B_ref(xn, B_w1, B_b1, B_w2, B_b2))
    return x + s * g
```

```python
import re, struct

def v(n, c=1): return f"v{n}" if c == 1 else f"v[{n}:{n+c-1}]"
def s(n, c=1): return f"s{n}" if c == 1 else f"s[{n}:{n+c-1}]"
def a(n, c=1): return f"a{n}" if c == 1 else f"a[{n}:{n+c-1}]"
def f2u(x): return struct.unpack('<I', struct.pack('<f', x))[0]
def fh(x): return f"0x{f2u(x):08x}"

_reg = re.compile(r'^(-|\|)?(abs\()?([vas])(\d+|\[(\d+):(\d+)\])\)?\|?$')
def regs(op):
    op = op.strip()
    if op in ('vcc', 'exec', 'm0', 'scc'): return {(op, 0)}
    if op in ('vcc_lo', 'vcc_hi'): return {('vcc', 0)}
    if op in ('exec_lo', 'exec_hi'): return {('exec', 0)}
    m = _reg.match(op)
    if not m: return set()
    k = m.group(3)
    if m.group(5) is not None: return {(k, i) for i in range(int(m.group(5)), int(m.group(6)) + 1)}
    return {(k, int(m.group(4)))}

TRANS = ('v_exp_f32', 'v_log_f32', 'v_rcp_f32', 'v_rsq_f32', 'v_sqrt_f32', 'v_sin_f32', 'v_cos_f32', 'v_rcp_iflag_f32')

class Ins:
    def __init__(self, text):
        self.text = text
        t = text.split(';')[0].strip()
        self.label = t[:-1] if t.endswith(':') else None
        self.directive = t.startswith('.') and not self.label
        self.empty = (t == '')
        self.op = ''
        self.w = set(); self.r = set()
        self.kind = 'none'
        if self.label or self.directive or self.empty: return
        parts = t.split(None, 1)
        op = parts[0]; self.op = op
        rest = parts[1] if len(parts) > 1 else ''
        ops = []; depth = 0; cur = ''
        for ch in rest:
            if ch in '[(': depth += 1
            if ch in '])': depth -= 1
            if ch == ',' and depth == 0: ops.append(cur.strip()); cur = ''
            else: cur += ch
        if cur.strip(): ops.append(cur.strip())
        mods = ''
        if ops:
            lp = ops[-1].split(None, 1)
            ops[-1] = lp[0]; mods = lp[1] if len(lp) > 1 else ''
        self.ops = ops; self.mods = mods
        R = [regs(o) for o in ops]
        base = re.sub(r'_(e32|e64|dpp|sdwa)$', '', op)
        self.base = base
        self.passes = 0; self.dpp = False; self.wide_store = set(); self.A = self.B = self.C = set()
        if op.startswith('v_mfma'):
            self.kind = 'mfma'
            self.passes = 8 if '32x32x16' in op else 4 if '16x16x32' in op else None
            assert self.passes, op
            self.w = R[0]; self.A = R[1]; self.B = R[2]; self.C = R[3]; self.r = R[1] | R[2] | R[3]
        elif op.startswith('v_'):
            self.kind = 'valu'
            nd = 1
            if base in ('v_add_co_u32', 'v_sub_co_u32', 'v_addc_co_u32', 'v_subb_co_u32', 'v_mad_u64_u32', 'v_div_scale_f32'): nd = 2
            if base == 'v_nop': nd = 0
            for x in R[:nd]: self.w |= x
            for x in R[nd:]: self.r |= x
            if base in ('v_fmac_f32', 'v_dot2c_f32_bf16', 'v_pk_fmac_f16', 'v_writelane_b32'): self.r |= R[0]
            if 'swap' in base: self.w |= R[1]; self.r |= R[0]
            if op.endswith('_dpp') or 'row_' in mods or 'quad_perm' in mods: self.dpp = True; self.r |= R[0]
            if base.startswith('v_cmpx'): self.w |= {('exec', 0)}
        elif op.startswith('buffer_') or op.startswith('global_') or op.startswith('flat_'):
            self.kind = 'vmem'
            lds = (' lds' in ' ' + mods) or '_lds_' in op
            self.lds = lds
            if 'store' in op or 'atomic' in op:
                for x in R: self.r |= x
                if op.endswith('x4') or op.endswith('x3'):
                    self.wide_store = R[0] if op.startswith('buffer_') else R[1]
                if 'atomic' in op and 'sc0' in mods and op.startswith('buffer_'): self.w |= R[0]
            elif op in ('buffer_inv', 'buffer_wbl2'):
                pass
            elif lds:
                for x in R: self.r |= x
                self.r |= {('m0', 0)}
            else:
                self.w = R[0]
                for x in R[1:]: self.r |= x
        elif op.startswith('ds_'):
            self.kind = 'ds'
            if op.startswith('ds_read') or 'permute' in op or 'swizzle' in op or '_rtn' in op:
                self.w = R[0]
                for x in R[1:]: self.r |= x
            else:
                for x in R: self.r |= x
        elif op.startswith('s_'):
            self.kind = 'salu'
            if op.startswith(('s_cmp', 's_cbranch', 's_branch', 's_waitcnt', 's_barrier', 's_nop', 's_endpgm', 's_sleep', 's_setprio', 's_bitcmp')):
                for x in R: self.r |= x
            else:
                if R: self.w = R[0]
                for x in R[1:]: self.r |= x
                if 'saveexec' in op: self.w |= {('exec', 0)}
        else:
            raise ValueError('unknown instruction ' + text)
    def states(self):
        if self.label or self.directive or self.empty: return 0
        if self.op == 's_nop': return int(self.ops[0], 0) + 1
        return 1

def vg(x): return {r for r in x if r[0] in 'va'}
def sg(x): return {r for r in x if r[0] in ('s', 'vcc')}

def need(p, c):
    n = 0
    if p.kind == 'valu':
        pw = vg(p.w)
        if pw:
            if c.kind == 'mfma' and pw & c.r: n = max(n, 2)
            if c.kind == 'valu':
                if c.dpp and pw & c.r: n = max(n, 2)
                if 'permlane' in c.base and pw & c.r: n = max(n, 2)
                if c.base in ('v_readlane_b32', 'v_readfirstlane_b32') and pw & c.r: n = max(n, 1)
            if p.base in TRANS and pw & c.r and not (c.kind == 'valu' and c.base in TRANS): n = max(n, 1)
            if p.base.startswith('v_dot'):
                if c.kind == 'valu' and c.base == p.base:
                    srcab = set()
                    for o in c.ops[1:3]: srcab |= regs(o)
                    if pw & srcab: n = max(n, 3)
                elif pw & (c.r | c.w): n = max(n, 3)
            if p.op.endswith('_sdwa') and c.kind in ('valu', 'mfma') and pw & (c.r | c.w): n = max(n, 1)
        ps = sg(p.w)
        if ps:
            if c.kind == 'valu' and ps & c.r:
                n = max(n, 4 if c.base in ('v_readlane_b32', 'v_writelane_b32') else 2)
            if c.kind == 'vmem' and ps & c.r: n = max(n, 5)
            if c.kind == 'salu' and ps & c.r: n = max(n, 2)
            if c.kind == 'salu' and c.op.startswith('s_cbranch_vcc') and ('vcc', 0) in ps: n = max(n, 5)
        if ('exec', 0) in p.w and c.kind in ('valu', 'mfma'): n = max(n, 5)
    elif p.kind == 'mfma':
        P = p.passes
        if c.kind == 'mfma':
            if p.w & c.C:
                if not (p.w == c.C and c.passes == P): n = max(n, P + 2)
            if p.w & (c.A | c.B): n = max(n, P + 4)
            if p.w & c.w and not (p.w == c.w and c.passes == P): n = max(n, P + 2)
        elif c.kind in ('valu', 'vmem', 'ds'):
            if p.w & (c.r | c.w): n = max(n, P + 4)
            if vg(p.C) & c.w: n = max(n, P - 1)
    elif p.kind == 'salu':
        if ('m0', 0) in p.w and c.kind == 'vmem' and ('m0', 0) in c.r: n = max(n, 1)
    elif p.kind == 'vmem':
        if p.wide_store & c.w: n = max(n, 2 if c.kind in ('valu', 'mfma') else 1)
    return n

WINDOW = 14

class Asm:
    def __init__(self): self.items = []
    def __call__(self, text):
        for line in text.split('\n'):
            line = line.strip()
            if line: self.items.append(Ins(line))
    def label(self, name): self.items.append(Ins(name + ':'))
    def comment(self, t): self.items.append(Ins('; ' + t))

    def _deficit(self, hist, seq):
        worst = 0; off = 0
        for c in seq:
            if off > WINDOW: break
            if c.states() == 0: continue
            for p, d in hist:
                k = need(p, c) - (d + off)
                worst = max(worst, k)
            if c.op in ('s_branch', 's_endpgm'): break
            off += c.states()
        return worst

    def finalize(self):
        items = self.items
        labels = {it.label: i for i, it in enumerate(items) if it.label}
        out = []
        hist = []
        def push(it):
            nonlocal hist
            st = it.states()
            out.append(it)
            if st:
                hist = [(p, d + st) for p, d in hist if d + st <= WINDOW]
                hist.append((it, 0))
        def nops(k):
            while k > 0:
                n = min(k, 16); push(Ins(f's_nop {n-1}')); k -= n
        for i, it in enumerate(items):
            if it.states() == 0:
                out.append(it); continue
            nops(self._deficit(hist, [it]))
            if it.op.startswith('s_cbranch') or it.op == 's_branch':
                tgt = labels[it.ops[0]]
                h2 = [(p, d + 1) for p, d in hist]
                nops(self._deficit(h2, items[tgt:tgt + 40]))
            push(it)
            if it.op in ('s_branch', 's_endpgm'): hist = []
        return '\n'.join(('' if (it.label or it.directive) else '    ') + it.text for it in out) + '\n'
```

```python
import math
from asmlib import *
import layouts as L
from gen import VA, srd, header, unpack, XB, LOG2E
from gen_k2 import pk_cmul_conj

STAT = 131072
K1_LDS = STAT + 2048
BC = 'op_sel_hi:[1,0]'
def rnd_bf16(A, d, src):
    A(f'v_cvt_pk_bf16_f32 {v(d)}, {v(src)}, {v(src)}')
    A(f'v_and_b32 {v(d)}, 0xffff0000, {v(d)}')
def rstd(A, d, var):
    A(f'v_max_f32 {v(d)}, 0, {v(var)}')
    rnd_bf16(A, d, d)
    A(f'v_add_f32 {v(d)}, {fh(1e-5)}, {v(d)}')
    rnd_bf16(A, d, d)
    A(f'v_sqrt_f32 {v(d)}, {v(d)}')
    rnd_bf16(A, d, d)
    A(f'v_rcp_f32 {v(d)}, {v(d)}')
def allred16(A, x):
    for n in (8, 4, 2, 1):
        A(f'v_add_f32_dpp {v(x)}, {v(x)}, {v(x)} row_ror:{n} row_mask:0xf bank_mask:0xf')

def gen_fft(A):
    V = VA()
    A.label('k1_fft')
    srd(A, 12, 8, 0, XB); srd(A, 16, 40, 0, 2048 * 642); srd(A, 20, 42, 0, 2048 * 642)
    srd(A, 24, 6, L.OFF_A, L.SZ_A); srd(A, 28, 6, L.OFF_WT, L.SZ_A)
    A('s_lshl_b32 s32, s4, 3\ns_add_u32 s32, s32, s3')
    A('s_lshr_b32 s33, s32, 5\ns_lshl_b32 s33, s33, 7\ns_and_b32 s34, s32, 31\ns_add_u32 s33, s33, s34')
    A(f's_mul_i32 s34, s33, 1280\ns_add_u32 s35, s34, {1024*1280}')
    lane, g, j, t0, t1, t2 = V(), V(), V(), V(), V(), V()
    A(f'v_and_b32 {v(lane)}, 63, v0')
    A(f'v_lshrrev_b32 {v(g)}, 4, {v(lane)}')
    A(f'v_and_b32 {v(j)}, 15, v0')
    A(f'v_mul_u32_u24 {v(t0)}, {32*1280}, {v(g)}')
    A(f'v_lshl_add_u32 {v(t0)}, {v(j)}, 4, {v(t0)}')
    XP = V(40, 4)
    for b in range(2):
        for i in range(5): A(f'buffer_load_dwordx4 {v(XP+20*b+4*i,4)}, {v(t0)}, s[12:15], s{34+b} offen offset:{256*i}')
    WL = V(48, 4)
    A(f'v_lshlrev_b32 {v(t1)}, 2, {v(lane)}')
    A('s_mul_i32 s36, s33, 1284')
    for r in range(4):
        if r: A(f's_add_u32 s36, s36, {32*1284}')
        for pl in range(2):
            for cc in range(6):
                A(f'buffer_load_dword {v(WL+(cc*2+pl)*4+r)}, {v(t1)}, s[{16+4*pl}:{19+4*pl}], s36 offen offset:{256*cc}')
    C1 = V(4, 4); S1 = V(4, 4); TC = V(8, 2); TS = V(8, 2); M = V(32, 4)
    wa, r1, r2, o0, o1, o1z = V(), V(), V(), V(), V(), V()
    mk = V.mark()
    fj, fg4, th, st, sgn = V(), V(), V(), V(), V()
    cs = V(8); sn = V(8)
    def m2(T2, T, part): return M + ((T2 * 2 + T) * 2 + part) * 4
    A(f'v_cvt_f32_u32 {v(fj)}, {v(j)}')
    A(f'v_lshlrev_b32 {v(t2)}, 2, {v(g)}')
    A(f'v_cvt_f32_u32 {v(fg4)}, {v(t2)}')
    def angles(scale, list_u, base_g, dc, ds):
        A(f'v_mul_f32 {v(st)}, {fh(scale)}, {v(fj)}')
        if base_g: A(f'v_mul_f32 {v(th)}, {v(st)}, {v(fg4)}')
        for n, u in enumerate(list_u):
            if base_g:
                if u: A(f'v_fmamk_f32 {v(ds+n)}, {v(st)}, {fh(float(u))}, {v(th)}'); an = ds + n
                else: an = th
            else: A(f'v_mul_f32 {v(ds+n)}, {fh(float(u))}, {v(st)}'); an = ds + n
            A(f'v_cos_f32 {v(dc+n)}, {v(an)}\nv_sin_f32 {v(ds+n)}, {v(an)}')
    angles(1 / 20, [0, 1, 2, 3], True, cs, sn)
    angles(1 / 20, [16, 17, 18, 19], False, cs + 4, sn + 4)
    A(f'v_cmp_eq_u32 vcc, 0, {v(g)}')
    for i in range(4):
        A(f'v_cvt_pk_bf16_f32 {v(C1+i)}, {v(cs+2*i)}, {v(cs+2*i+1)}')
        A(f'v_cvt_pk_bf16_f32 {v(S1+i)}, -{v(sn+2*i)}, -{v(sn+2*i+1)}')
    for i in (2, 3):
        A(f'v_cndmask_b32 {v(C1+i)}, 0, {v(C1+i)}, vcc\nv_cndmask_b32 {v(S1+i)}, 0, {v(S1+i)}, vcc')
    angles(1 / 640, [0, 1, 2, 3, 16, 17, 18, 19], True, TC, TS)
    angles(1 / 32, [0, 1, 2, 3], True, cs, sn)
    A(f'v_lshlrev_b32 {v(sgn)}, 31, {v(j)}')
    for c in range(4): A(f'v_xor_b32 {v(cs+4+c)}, {v(sgn)}, {v(cs+c)}\nv_xor_b32 {v(sn+4+c)}, {v(sgn)}, {v(sn+c)}')
    for T2 in range(2):
        for T in range(2):
            for c in range(4):
                ng = (T2 == 1 and (c & 1)); P_ = '-' if ng else ''; N_ = '' if ng else '-'
                A(f'v_cvt_pk_bf16_f32 {v(m2(T2,T,0)+c)}, {P_}{v(cs+4*T+c)}, {P_}{v(sn+4*T+c)}')
                A(f'v_cvt_pk_bf16_f32 {v(m2(T2,T,1)+c)}, {N_}{v(sn+4*T+c)}, {P_}{v(cs+4*T+c)}')
    A('s_mul_i32 s37, s3, 10240')
    A(f'v_mul_u32_u24 {v(wa)}, 1280, {v(g)}')
    A(f'v_lshl_add_u32 {v(o0)}, {v(j)}, 4, {v(wa)}')
    A(f'v_add_u32 {v(wa)}, s37, {v(o0)}')
    A(f'v_bfe_u32 {v(t0)}, v0, 2, 2')
    A(f'v_and_b32 {v(t1)}, 3, v0')
    A(f'v_lshlrev_b32 {v(t1)}, 3, {v(t1)}')
    A(f'v_lshl_add_u32 {v(t1)}, {v(t0)}, 6, {v(t1)}')
    A(f'v_add_u32 {v(t1)}, s37, {v(t1)}')
    A(f'v_lshl_add_u32 {v(r1)}, {v(g)}, 8, {v(t1)}')
    A(f'v_add_u32 {v(r2)}, 1024, {v(t1)}')
    A(f'v_sub_u32 {v(o1)}, 4160, {v(o0)}')
    A(f'v_mov_b32 {v(t2)}, 0x40000000')
    A(f'v_cmp_gt_u32 vcc, 11, {v(j)}')
    A(f'v_cndmask_b32 {v(o0)}, {v(t2)}, {v(o0)}, vcc')
    A(f'v_subrev_u32 {v(t0)}, 1, {v(j)}')
    A(f'v_cmp_eq_u32 s[38:39], 0, {v(lane)}')
    A(f'v_cmp_gt_u32 vcc, 9, {v(t0)}')
    A(f'v_cndmask_b32 {v(o1z)}, {v(t2)}, {v(o1)}, s[38:39]')
    A(f'v_cndmask_b32 {v(o1z)}, {v(o1z)}, {v(o1)}, vcc')
    A(f'v_cndmask_b32 {v(o1)}, {v(t2)}, {v(o1)}, vcc')
    V.reset(mk)
    U = V(80, 4); sm = V(4, 2); mb = V(4, 2); rs = V(4, 2); dl = V(2)
    for b in range(2):
        A(f's_waitcnt vmcnt({48+5*(1-b)})')
        u = U + 40 * b; acc = sm + 2 * b
        for i in range(20): unpack(A, u + 2 * i, u + 2 * i + 1, XP + 20 * b + i)
        A(f'v_pk_add_f32 {v(acc,2)}, {v(u,2)}, {v(u+2,2)}')
        A(f'v_pk_add_f32 {v(rs,2)}, {v(u+4,2)}, {v(u+6,2)}')
        for i in range(4, 20, 2):
            A(f'v_pk_add_f32 {v(acc,2)}, {v(acc,2)}, {v(u+2*i,2)}')
            A(f'v_pk_add_f32 {v(rs,2)}, {v(rs,2)}, {v(u+2*i+2,2)}')
        A(f'v_pk_add_f32 {v(acc,2)}, {v(acc,2)}, {v(rs,2)}')
        A(f'v_add_f32 {v(acc)}, {v(acc)}, {v(acc+1)}')
    for n in (8, 4, 2, 1):
        for b in range(2): A(f'v_add_f32_dpp {v(sm+2*b)}, {v(sm+2*b)}, {v(sm+2*b)} row_ror:{n} row_mask:0xf bank_mask:0xf')
    for b in range(2):
        A(f'v_mul_f32 {v(sm+2*b)}, {fh(1/640)}, {v(sm+2*b)}')
        rnd_bf16(A, mb + 2 * b, sm + 2 * b)
        A(f'v_sub_f32 {v(dl+b)}, {v(sm+2*b)}, {v(mb+2*b)}')
    for b in range(2):
        u = U + 40 * b; acc = sm + 2 * b; ac2 = rs + 2 * b
        for i in range(20):
            A(f'v_pk_add_f32 {v(u+2*i,2)}, {v(u+2*i,2)}, {v(mb+2*b,2)} {BC} neg_lo:[0,1] neg_hi:[0,1]')
        A(f'v_pk_mul_f32 {v(acc,2)}, {v(u,2)}, {v(u,2)}')
        A(f'v_pk_mul_f32 {v(ac2,2)}, {v(u+2,2)}, {v(u+2,2)}')
        for i in range(2, 20, 2):
            A(f'v_pk_fma_f32 {v(acc,2)}, {v(u+2*i,2)}, {v(u+2*i,2)}, {v(acc,2)}')
            A(f'v_pk_fma_f32 {v(ac2,2)}, {v(u+2*i+2,2)}, {v(u+2*i+2,2)}, {v(ac2,2)}')
        A(f'v_pk_add_f32 {v(acc,2)}, {v(acc,2)}, {v(ac2,2)}')
        A(f'v_add_f32 {v(acc)}, {v(acc)}, {v(acc+1)}')
    for n in (8, 4, 2, 1):
        for b in range(2): A(f'v_add_f32_dpp {v(sm+2*b)}, {v(sm+2*b)}, {v(sm+2*b)} row_ror:{n} row_mask:0xf bank_mask:0xf')
    for b in range(2):
        A(f'v_mul_f32 {v(sm+2*b)}, {fh(1/640)}, {v(sm+2*b)}')
        A(f'v_fma_f32 {v(sm+2*b)}, -{v(dl+b)}, {v(dl+b)}, {v(sm+2*b)}')
        rstd(A, rs + 2 * b, sm + 2 * b)
    for i in range(20):
        a_, b_ = U + 2 * i, U + 40 + 2 * i
        t = sm + 2 * (i & 1)
        A(f'v_pk_mul_f32 {v(t,2)}, {v(a_,2)}, {v(rs,2)} {BC}')
        A(f'v_pk_fma_f32 {v(a_,2)}, {v(b_,2)}, {v(rs+2,2)}, {v(t,2)} op_sel_hi:[1,0,1]')
        A(f'v_pk_fma_f32 {v(b_,2)}, {v(b_,2)}, {v(rs+2,2)}, {v(t,2)} op_sel_hi:[1,0,1] neg_lo:[1,0,0] neg_hi:[1,0,0]')
        A(f'v_cvt_pk_bf16_f32 {v(XP+i)}, {v(a_)}, {v(a_+1)}')
        A(f'v_cvt_pk_bf16_f32 {v(XP+20+i)}, {v(b_)}, {v(b_+1)}')
        if i % 4 == 3:
            for b in range(2): A(f'ds_write_b128 {v(wa)}, {v(XP+20*b+i-3,4)} offset:{5120*b+256*(i//4)}')
    V.reset(mk)
    wo = V(2); PC = V(16, 4)
    A(f's_mul_i32 s44, s32, {2*L.GP}')
    A('s_mov_b32 s46, 0x05040100\ns_mov_b32 s47, 0x07060302')
    A('s_waitcnt vmcnt(0)')
    for cc in range(6):
        for hi in range(2):
            d = PC + ((cc & 1) * 2 + hi) * 4
            for r in range(4):
                A(f'v_perm_b32 {v(d+r)}, {v(WL+(cc*2+1)*4+r)}, {v(WL+(cc*2)*4+r)}, s{46+hi}')
            e0 = 128 * cc + hi
            A(f'v_lshl_add_u32 {v(t0)}, {v(lane)}, 1, {e0}' if e0 <= 64 else f'v_lshlrev_b32 {v(t0)}, 1, {v(lane)}\nv_add_u32 {v(t0)}, {e0}, {v(t0)}')
            A(f'v_lshlrev_b32 {v(wo+hi)}, 4, {v(t0)}')
            if cc == 2:
                A(f'v_cmp_lt_u32 vcc, 320, {v(t0)}')
                A(f'v_add_u32 {v(t1)}, 112, {v(wo+hi)}')
                A(f'v_cndmask_b32 {v(wo+hi)}, {v(wo+hi)}, {v(t1)}, vcc')
            if cc == 5:
                A(f'v_cndmask_b32 {v(wo+hi)}, {v(t2)}, {v(wo+hi)}, s[38:39]')
            A(f'buffer_store_dwordx4 {v(d,4)}, {v(wo+hi)}, s[28:31], s44 offen offset:{112 if cc > 2 else 0} sc1')
    V.reset(mk)
    DA = WL; D1 = V(64, 4); tp = V(4, 2)
    PO = XP
    A('s_mov_b32 s45, 0')
    A('s_waitcnt lgkmcnt(0)')
    A.label('k1_fft_loop')
    for row in range(4):
        for T in range(2):
            A(f'ds_read_b64_tr_b16 {v(DA+(row*2+T)*4,2)}, {v(r1)} offset:{row*1280+T*32}')
            A(f'ds_read_b64_tr_b16 {v(DA+(row*2+T)*4+2,2)}, {v(r2)} offset:{row*1280+T*32}')
    def d1(row, T, part): return D1 + ((row * 2 + T) * 2 + part) * 4
    for row in range(4):
        A(f's_waitcnt lgkmcnt({12-4*row})')
        for T in range(2):
            A(f'v_mfma_f32_16x16x32_bf16 {v(d1(row,T,0),4)}, {v(DA+(row*2+T)*4,4)}, {v(C1,4)}, 0')
            A(f'v_mfma_f32_16x16x32_bf16 {v(d1(row,T,1),4)}, {v(DA+(row*2+T)*4,4)}, {v(S1,4)}, 0')
    A(f'v_add_u32 {v(r1)}, 5120, {v(r1)}\nv_add_u32 {v(r2)}, 5120, {v(r2)}')
    for row in range(4):
        for T in range(2):
            for k in (0, 2):
                pk_cmul_conj(A, d1(row,T,0) + k, d1(row,T,1) + k, TC + 4 * T + k, TS + 4 * T + k, tp + k)
            for k in range(4): A(f'v_cvt_pk_bf16_f32 {v(DA+(row*2+T)*4+k)}, {v(d1(row,T,0)+k)}, {v(d1(row,T,1)+k)}')
        for T in range(2):
            for T2 in range(2):
                for part in range(2):
                    d = d1(row, T2, part)
                    A(f'v_mfma_f32_16x16x32_bf16 {v(d,4)}, {v(m2(T2,T,part),4)}, {v(DA+(row*2+T)*4,4)}, {v(d,4) if T else 0}')
    for row in range(4):
        for T2 in range(2):
            for r in range(4):
                A(f'v_cvt_pk_bf16_f32 {v(PO+(T2*4+r)*4+row)}, {v(d1(row,T2,0)+r)}, {"-" if T2 else ""}{v(d1(row,T2,1)+r)}')
    for r in range(4): A(f'buffer_store_dwordx4 {v(PO+r*4,4)}, {v(o0)}, s[24:27], s44 offen offset:{r*320} sc1')
    for r in range(4): A(f'buffer_store_dwordx4 {v(PO+(4+r)*4,4)}, {v(o1 if r else o1z)}, s[24:27], s44 offen offset:{(3-r)*320} sc1')
    A(f's_add_u32 s44, s44, {L.GP}\ns_add_u32 s45, s45, 1\ns_cmp_lt_u32 s45, 2\ns_cbranch_scc1 k1_fft_loop')
    A('s_endpgm')
    return V.hi

NST = 10; RING = 4
def gen_gemm(A):
    V = VA()
    A('s_and_b32 s10, s4, 3\ns_lshl_b32 s10, s10, 2\ns_and_b32 s11, s5, 3\ns_add_u32 s10, s10, s11')
    A('s_lshr_b32 s11, s4, 2\ns_mul_i32 s11, s11, 7\ns_lshr_b32 s28, s5, 2\ns_add_u32 s11, s11, s28')
    srd(A, 12, 8, 0, XB); srd(A, 16, 44, 0, 640 * 3456); srd(A, 20, 46, 0, 3456); srd(A, 24, 6, L.OFF_H, L.SZ_H)
    A('s_and_b32 s29, s3, 3\ns_lshr_b32 s30, s3, 2')
    lane, t0, t1, t2 = V(), V(), V(), V()
    A(f'v_and_b32 {v(lane)}, 63, v0')
    b1r = V(2, 2)
    A(f'v_lshlrev_b32 {v(t0)}, 2, {v(lane)}')
    A('s_lshl_b32 s31, s11, 8')
    A(f'buffer_load_dword {v(b1r)}, {v(t0)}, s[20:23], s31 offen')
    xo = V(2); wo = V()
    A(f'v_lshrrev_b32 {v(t0)}, 3, {v(lane)}')
    A(f'v_lshrrev_b32 {v(t1)}, 4, {v(lane)}')
    A(f'v_and_b32 {v(t2)}, 7, v0')
    A(f'v_xor_b32 {v(t2)}, {v(t2)}, {v(t1)}')
    A(f'v_mul_u32_u24 {v(xo)}, 1280, {v(t0)}')
    A(f'v_lshl_add_u32 {v(xo)}, {v(t2)}, 4, {v(xo)}')
    A(f'v_xor_b32 {v(xo+1)}, 64, {v(xo)}')
    A(f'v_add_u32 {v(xo+1)}, {8*1280}, {v(xo+1)}')
    A(f'v_lshlrev_b32 {v(t0)}, 2, {v(t1)}')
    A(f'v_and_b32 {v(t2)}, 15, v0')
    A(f'v_xor_b32 {v(t2)}, {v(t2)}, {v(t0)}')
    A(f'v_mul_u32_u24 {v(wo)}, 3456, {v(t1)}')
    A(f'v_lshl_add_u32 {v(wo)}, {v(t2)}, 4, {v(wo)}')
    A('s_add_u32 s32, s10, s11\ns_and_b32 s32, s32, 3\ns_mul_i32 s32, s32, 5\ns_lshr_b32 s32, s32, 1')
    A('s_lshl_b32 s33, s10, 3\ns_add_u32 s33, s33, s3\ns_mul_i32 s33, s33, 20480')
    A(f's_mul_i32 s34, s3, {8*3456}\ns_add_u32 s34, s34, s31')
    A('s_lshl_b32 s35, s3, 11')
    def issue(st):
        slot = st % RING
        A(f's_lshl_b32 s36, s32, 7\ns_add_u32 s36, s36, s33')
        A(f's_mul_i32 s37, s32, {64*3456}\ns_add_u32 s37, s37, s34\ns_add_u32 s38, s37, {4*3456}')
        A(f's_add_u32 m0, s35, {slot*16384}')
        A(f'buffer_load_dwordx4 {v(xo)}, s[12:15], s36 offen lds')
        A(f's_add_u32 m0, s35, {slot*16384+1024}')
        A(f'buffer_load_dwordx4 {v(xo+1)}, s[12:15], s36 offen lds')
        A(f's_add_u32 m0, s35, {65536+slot*16384}')
        A(f'buffer_load_dwordx4 {v(wo)}, s[16:19], s37 offen lds')
        A(f's_add_u32 m0, s35, {65536+slot*16384+1024}')
        A(f'buffer_load_dwordx4 {v(wo)}, s[16:19], s38 offen lds')
        A('s_add_u32 s32, s32, 1\ns_cmp_eq_u32 s32, 10\ns_cselect_b32 s32, 0, s32')
    for st in range(RING): issue(st)
    xa = V(4); wa = V(8); j, h = V(), V()
    A(f'v_and_b32 {v(j)}, 31, v0')
    A(f'v_bfe_u32 {v(h)}, v0, 5, 1')
    A('s_xor_b32 s39, s29, s30')
    A(f'v_bfe_u32 {v(t0)}, v0, 1, 3')
    A(f'v_xor_b32 {v(t0)}, {v(t0)}, {v(h)}')
    A(f'v_lshlrev_b32 {v(t0)}, 4, {v(t0)}')
    A(f'v_lshl_add_u32 {v(t0)}, {v(j)}, 7, {v(t0)}')
    A('s_lshl_b32 s40, s29, 12')
    A(f'v_add_u32 {v(t0)}, s40, {v(t0)}')
    for p in range(4):
        A(f's_xor_b32 s40, s39, {p}\ns_lshl_b32 s40, s40, 5')
        A(f'v_xor_b32 {v(xa+p)}, s40, {v(t0)}')
    A(f'v_bfe_u32 {v(t0)}, v0, 2, 2')
    A(f'v_lshl_add_u32 {v(t1)}, {v(h)}, 3, {v(t0)}')
    A(f'v_lshlrev_b32 {v(t1)}, 8, {v(t1)}')
    A(f'v_bfe_u32 {v(t2)}, v0, 4, 1')
    A(f'v_lshl_add_u32 {v(t1)}, {v(t2)}, 5, {v(t1)}')
    A(f'v_and_b32 {v(t2)}, 3, v0')
    A(f'v_lshl_add_u32 {v(t1)}, {v(t2)}, 3, {v(t1)}')
    A(f'v_lshl_add_u32 {v(t1)}, {v(t0)}, 6, {v(t1)}')
    for p in range(4):
        for t in range(2):
            A(f's_xor_b32 s40, s39, {p}\ns_lshl_b32 s40, s40, 12\ns_lshl_b32 s41, s30, 7\ns_or_b32 s40, s40, s41\ns_or_b32 s40, s40, {65536+64*t}')
            A(f'v_xor_b32 {v(wa+2*p+t)}, s40, {v(t1)}')
    z = V(2, 2); sa = V(2); qa = V(2); ca = V(4)
    A(f'v_mov_b32 {v(z)}, 0\nv_mov_b32 {v(z+1)}, 0')
    for r in (sa, sa + 1, qa, qa + 1, ca, ca + 1, ca + 2, ca + 3): A(f'v_mov_b32 {v(r)}, 0')
    A(f'v_lshlrev_b32 {v(t0)}, 3, {v(lane)}')
    A(f'v_add_u32 {v(t0)}, {STAT}, {v(t0)}')
    for i in range(3): A(f'ds_write_b64 {v(t0)}, {v(z,2)} offset:{512*i}')
    A('s_mov_b32 s42, 0x3f803f80')
    A(f's_waitcnt vmcnt({4*RING})')
    A(f'v_and_b32 {v(b1r+1)}, 0xffff0000, {v(b1r)}\nv_lshlrev_b32 {v(b1r)}, 16, {v(b1r)}')
    A(f'ds_write_b64 {v(t0)}, {v(b1r,2)} offset:1536')
    ACC = V(32, 4); XF = V(8, 4); WF = V(16, 4)
    def reads(k):
        st, p = divmod(k, 4); off = (st % RING) * 16384; b = k & 1
        A(f'ds_read_b128 {v(XF+4*b,4)}, {v(xa+p)} offset:{off}')
        for t in range(2):
            for e in range(2):
                A(f'ds_read_b64_tr_b16 {v(WF+8*b+4*t+2*e,2)}, {v(wa+2*p+t)} offset:{off+1024*e}')
    NK = 4 * NST
    issued = RING
    A(f's_waitcnt vmcnt({4*(issued-1)}) lgkmcnt(0)\ns_barrier')
    reads(0)
    for k in range(NK):
        st, p = divmod(k, 4); b = k & 1
        if k + 1 < NK and (k + 1) % 4 == 0:
            A(f's_waitcnt vmcnt({4*(issued-st-2)}) lgkmcnt(0)\ns_barrier')
            reads(k + 1)
            if issued < NST: issue(issued); issued += 1
        elif k + 1 < NK:
            A('s_waitcnt lgkmcnt(0)')
            reads(k + 1)
        else: A('s_waitcnt lgkmcnt(0)')
        for t in range(2):
            A(f'v_mfma_f32_32x32x16_bf16 {v(ACC+16*t,16)}, {v(WF+8*b+4*t,4)}, {v(XF+4*b,4)}, {v(ACC+16*t,16) if k else 0}')
            if p in (0, 2):
                for i in (2 * t, 2 * t + 1):
                    A(f'v_dot2c_f32_bf16 {v(sa+(i&1))}, s42, {v(XF+4*b+i)}')
                    A(f'v_dot2c_f32_bf16 {v(qa+(i&1))}, {v(XF+4*b+i)}, {v(XF+4*b+i)}')
            if p == 1:
                for i in range(4): A(f'v_dot2c_f32_bf16 {v(ca+2*t+(i&1))}, s42, {v(WF+8*b+4*t+i)}')
    A(f'v_add_f32 {v(sa)}, {v(sa)}, {v(sa+1)}\nv_add_f32 {v(qa)}, {v(qa)}, {v(qa+1)}')
    A(f'v_add_f32 {v(ca)}, {v(ca)}, {v(ca+1)}\nv_add_f32 {v(ca+2)}, {v(ca+2)}, {v(ca+3)}')
    A(f's_lshl_b32 s40, s29, 7\ns_add_u32 s40, s40, {STAT}')
    A(f'v_lshl_add_u32 {v(t0)}, {v(j)}, 2, s40')
    A(f's_lshl_b32 s41, s30, 8\ns_add_u32 s41, s41, {STAT+1024}')
    A(f'v_lshl_add_u32 {v(t1)}, {v(j)}, 2, s41')
    A(f'ds_add_f32 {v(t0)}, {v(sa)}\nds_add_f32 {v(t0)}, {v(qa)} offset:512')
    A(f'ds_add_f32 {v(t1)}, {v(ca)}\nds_add_f32 {v(t1)}, {v(ca+2)} offset:128')
    A(f'v_lshl_add_u32 {v(t1)}, {v(h)}, 4, s41')
    A('s_waitcnt lgkmcnt(0)\ns_barrier')
    A('s_cmp_eq_u32 s11, 13\ns_cselect_b32 s40, s30, 0\ns_cmp_lg_u32 s40, 0\ns_cbranch_scc1 k1_end')
    CC = V(32, 4); BB = V(32, 4)
    A(f'ds_read_b32 {v(sa)}, {v(t0)}\nds_read_b32 {v(qa)}, {v(t0)} offset:512')
    for i in range(8):
        A(f'ds_read_b128 {v(CC+4*i,4)}, {v(t1)} offset:{32*i}')
        A(f'ds_read_b128 {v(BB+4*i,4)}, {v(t1)} offset:{512+32*i}')
    rr = V(2, 2); rm = V(2, 2); k1 = V(2, 2); k2 = V(2, 2); one = V(2, 2); ho = V()
    c1 = -2 * math.sqrt(2 / math.pi) * LOG2E
    A(f'v_mov_b32 {v(k1)}, {fh(c1)}\nv_mov_b32 {v(k2)}, {fh(c1*0.044715)}\nv_mov_b32 {v(one)}, 1.0')
    A(f'v_lshlrev_b32 {v(ho)}, 4, {v(lane)}')
    A('s_lshl_b32 s40, s10, 2\ns_add_u32 s40, s40, s29\ns_mul_i32 s40, s40, 108\ns_lshl_b32 s41, s11, 3\ns_add_u32 s40, s40, s41')
    A('s_lshl_b32 s41, s30, 2\ns_add_u32 s40, s40, s41\ns_lshl_b32 s40, s40, 10')
    A('s_waitcnt lgkmcnt(15)\ns_waitcnt lgkmcnt(14)')
    A(f'v_mul_f32 {v(sa)}, {fh(1/640)}, {v(sa)}\nv_mul_f32 {v(qa)}, {fh(1/640)}, {v(qa)}')
    A(f'v_fma_f32 {v(qa)}, -{v(sa)}, {v(sa)}, {v(qa)}')
    rstd(A, rr, qa)
    rnd_bf16(A, sa, sa)
    A(f'v_mul_f32 {v(rm)}, {v(rr)}, {v(sa)}')
    Q = V(8, 2); HO = V(8, 4)
    for c in range(4):
        A(f's_waitcnt lgkmcnt({12-4*c})')
        u = ACC + 8 * c
        for i in range(4): A(f'v_pk_fma_f32 {v(BB+8*c+2*i,2)}, {v(CC+8*c+2*i,2)}, {v(rm,2)}, {v(BB+8*c+2*i,2)} op_sel_hi:[1,0,1] neg_lo:[1,0,0] neg_hi:[1,0,0]')
        for i in range(4): A(f'v_pk_fma_f32 {v(u+2*i,2)}, {v(u+2*i,2)}, {v(rr,2)}, {v(BB+8*c+2*i,2)} op_sel_hi:[1,0,1]')
        for i in range(4): A(f'v_pk_mul_f32 {v(Q+2*i,2)}, {v(u+2*i,2)}, {v(u+2*i,2)}')
        for i in range(4): A(f'v_pk_fma_f32 {v(Q+2*i,2)}, {v(Q+2*i,2)}, {v(k2,2)}, {v(k1,2)} op_sel_hi:[1,0,0]')
        for i in range(4): A(f'v_pk_mul_f32 {v(Q+2*i,2)}, {v(Q+2*i,2)}, {v(u+2*i,2)}')
        for i in range(8): A(f'v_exp_f32 {v(Q+i)}, {v(Q+i)}')
        for i in range(4): A(f'v_pk_add_f32 {v(Q+2*i,2)}, {v(Q+2*i,2)}, {v(one,2)} {BC}')
        for i in range(8): A(f'v_rcp_f32 {v(Q+i)}, {v(Q+i)}')
        for i in range(4): A(f'v_pk_mul_f32 {v(u+2*i,2)}, {v(u+2*i,2)}, {v(Q+2*i,2)}')
        d = HO + 4 * (c & 1)
        for i in range(4): A(f'v_cvt_pk_bf16_f32 {v(d+i)}, {v(u+2*i)}, {v(u+2*i+1)}')
        A(f'buffer_store_dwordx4 {v(d,4)}, {v(ho)}, s[24:27], s40 offen offset:{1024*c} sc1')
    return V.hi

def gen_k1(A):
    header(A, 'k1_kernel')
    A('s_cmp_ge_u32 s2, 256\ns_cbranch_scc1 k1_end')
    A('s_load_dwordx2 s[6:7], s[0:1], 80\ns_load_dwordx2 s[8:9], s[0:1], 0\ns_load_dwordx4 s[40:43], s[0:1], 8\ns_load_dwordx4 s[44:47], s[0:1], 32')
    A('v_lshrrev_b32 v1, 6, v0')
    A('v_readfirstlane_b32 s3, v1')
    A('s_and_b32 s4, s2, 7\ns_lshr_b32 s5, s2, 3')
    A('s_waitcnt lgkmcnt(0)')
    A('s_cmp_lt_u32 s5, 28\ns_cbranch_scc1 k1_gemm')
    A('s_sub_u32 s4, s2, 224')
    n1 = gen_fft(A)
    A.label('k1_gemm')
    n2 = gen_gemm(A)
    A.label('k1_end')
    A('s_endpgm')
    return max(n1, n2)
```

```python
from asmlib import *
import layouts as L
from gen import VA, srd, header, unpack, XB

K2_LDS = 131072
assert all(((i * 3277) >> 16) == i // 20 for i in range(320))

def pk_cmul_conj(A, re, im, c, sn, t):
    A(f'v_pk_mul_f32 {v(t,2)}, {v(re,2)}, {v(sn,2)}')
    A(f'v_pk_mul_f32 {v(re,2)}, {v(re,2)}, {v(c,2)}')
    A(f'v_pk_fma_f32 {v(re,2)}, {v(im,2)}, {v(sn,2)}, {v(re,2)}')
    A(f'v_pk_fma_f32 {v(im,2)}, {v(im,2)}, {v(c,2)}, {v(t,2)} neg_lo:[0,0,1] neg_hi:[0,0,1]')
def pk_cmul(A, re, im, c, sn, t):
    A(f'v_pk_mul_f32 {v(t,2)}, {v(re,2)}, {v(sn,2)}')
    A(f'v_pk_mul_f32 {v(re,2)}, {v(re,2)}, {v(c,2)}')
    A(f'v_pk_fma_f32 {v(re,2)}, {v(im,2)}, {v(sn,2)}, {v(re,2)} neg_lo:[1,0,0] neg_hi:[1,0,0]')
    A(f'v_pk_fma_f32 {v(im,2)}, {v(im,2)}, {v(c,2)}, {v(t,2)}')

def gen_fft(A):
    V = VA()
    A.label('k2_fft')
    A('s_cmp_ge_u32 s4, 54\ns_cbranch_scc1 k2_end')
    srd(A, 12, 6, L.OFF_A, L.SZ_A); srd(A, 16, 6, L.OFF_WT, L.SZ_A); srd(A, 20, 6, L.OFF_P, L.SZ_A)
    A('s_and_b32 s24, s4, 1\ns_lshr_b32 s25, s4, 1')
    lane, t0, t1, t2, vo = V(), V(), V(), V(), V()
    A(f'v_and_b32 {v(lane)}, 63, v0')
    A(f'v_lshrrev_b32 {v(t0)}, 4, {v(lane)}')
    A('s_and_b32 s26, s3, 3\ns_lshl_b32 s26, s26, 2')
    A(f'v_add_u32 {v(t1)}, s26, {v(t0)}')
    A(f'v_and_b32 {v(t2)}, 15, v0')
    A(f'v_xor_b32 {v(t1)}, {v(t1)}, {v(t2)}')
    A(f'v_mul_u32_u24 {v(vo)}, {2*L.GP}, {v(t0)}')
    A(f'v_lshl_add_u32 {v(vo)}, {v(t1)}, 4, {v(vo)}')
    A(f'v_cmp_gt_u32 vcc, 12, {v(t1)}')
    A(f'v_mov_b32 {v(t2)}, 0x40000000')
    A(f'v_cndmask_b32 {v(vo)}, {v(t2)}, {v(vo)}, vcc')
    A(f's_lshl_b32 s27, s3, 3\ns_add_u32 s27, s27, s24\ns_mul_i32 s27, s27, {L.GP}\ns_mul_i32 s28, s25, 192\ns_add_u32 s27, s27, s28')
    A('s_lshl_b32 s29, s3, 10')
    for i in range(8):
        A('s_mov_b32 m0, s29')
        A(f'buffer_load_dwordx4 {v(vo)}, s[12:15], s27 offen lds')
        A('s_add_u32 m0, s29, 65536')
        A(f'buffer_load_dwordx4 {v(vo)}, s[16:19], s27 offen lds')
        if i < 7: A(f's_add_u32 s27, s27, {64*L.GP}\ns_add_u32 s29, s29, 8192')
    j, h = V(), V()
    A(f'v_and_b32 {v(j)}, 31, v0')
    A(f'v_bfe_u32 {v(h)}, v0, 5, 1')
    fj, fh4, sa, pa, sb, pb, pt_ = V(), V(), V(), V(), V(), V(), V()
    A(f'v_cvt_f32_u32 {v(fj)}, {v(j)}')
    A(f'v_lshlrev_b32 {v(t0)}, 2, {v(h)}')
    A(f'v_cvt_f32_u32 {v(fh4)}, {v(t0)}')
    A(f's_cmp_eq_u32 s24, 0\ns_cselect_b32 s30, 0, {fh(1/64)}')
    A(f'v_mul_f32 {v(sb)}, {fh(1/32)}, {v(fj)}')
    A(f'v_add_f32 {v(sa)}, s30, {v(sb)}')
    A(f'v_mul_f32 {v(pa)}, {v(sa)}, {v(fh4)}')
    A(f'v_mul_f32 {v(pb)}, {v(sb)}, {v(fh4)}')
    A(f'v_fma_f32 {v(pt_)}, {v(fj)}, s30, {v(pb)}')
    FA = V(32, 4); FB = V(32, 4); FT = V(32, 4)
    T1C = V(16, 2); T1S = V(16, 2); T2C = V(16, 2); T2S = V(16, 2)
    X = V(16, 4); Wd = V(16, 4); RE = V(16, 4); IM = V(16, 4); tp = V(4, 2); wu = V(4, 2)
    tmp = [RE + i for i in range(16)] + [IM + i for i in range(16)]
    n = 0
    def gen_set(M, step, ph, TC, TS):
        nonlocal n
        for g in range(4):
            for r in range(4):
                u = 8 * g + r; k = 4 * g + r
                an, c_, s_ = tmp[(3 * n) % 30], tmp[(3 * n + 1) % 30], tmp[(3 * n + 2) % 30]; n += 1
                if u: A(f'v_fmamk_f32 {v(an)}, {v(step)}, {fh(float(u))}, {v(ph)}')
                else: an = ph
                A(f'v_cos_f32 {v(c_)}, {v(an)}\nv_sin_f32 {v(s_)}, {v(an)}')
                if TC is not None:
                    A(f'v_mul_f32 {v(TC+k)}, {fh(1/32)}, {v(an)}')
                    A(f'v_sin_f32 {v(TS+k)}, {v(TC+k)}\nv_cos_f32 {v(TC+k)}, {v(TC+k)}')
                A(f'v_cvt_pk_bf16_f32 {v(M+k)}, {v(c_)}, {v(s_)}')
                A(f'v_cvt_pk_bf16_f32 {v(M+16+k)}, -{v(s_)}, {v(c_)}')
    gen_set(FA, sa, pa, T1C, T1S)
    gen_set(FB, sb, pb, None, None)
    gen_set(FT, sb, pt_, T2C, T2S)
    rb0, ra, rw, so = V(), V(), V(), V()
    A(f'v_lshlrev_b32 {v(rb0)}, 8, {v(lane)}')
    A(f'v_and_b32 {v(t2)}, 15, v0')
    A(f'v_mul_u32_u24 {v(so)}, {16*L.GP}, {v(j)}')
    A(f'v_mul_u32_u24 {v(t0)}, {2*L.GP}, {v(h)}')
    A(f'v_add_u32 {v(so)}, {v(so)}, {v(t0)}')
    A('s_mov_b32 s31, s3')
    A('s_waitcnt vmcnt(0)\ns_barrier')
    A.label('k2_task')
    A('s_mul_i32 s32, s25, 12\ns_add_u32 s32, s32, s31')
    A('s_cmp_gt_u32 s32, 320\ns_cbranch_scc1 k2_end')
    A(f'v_xor_b32 {v(t0)}, s31, {v(t2)}')
    A(f'v_lshl_add_u32 {v(ra)}, {v(t0)}, 4, {v(rb0)}')
    A(f'v_add_u32 {v(rw)}, 0x10000, {v(ra)}')
    for q in range(4): A(f'ds_read_b128 {v(X+4*q,4)}, {v(ra)} offset:{q*16384}')
    for q in range(4): A(f'ds_read_b128 {v(Wd+4*q,4)}, {v(rw)} offset:{q*16384}')
    A(f's_mul_i32 s33, s24, {L.GP}\ns_lshl_b32 s32, s32, 4\ns_add_u32 s33, s33, s32')
    for g in range(1, 4): A(f's_add_u32 s{33+g}, s33, {g*4*L.GP}')
    def stage(M, data_is_A, waits=False):
        for q in range(4):
            if waits: A(f's_waitcnt lgkmcnt({7-q})')
            for D, off in ((RE, 0), (IM, 16)):
                a_, b_ = (v(X+4*q,4), v(M+off+4*q,4)) if data_is_A else (v(M+off+4*q,4), v(X+4*q,4))
                A(f'v_mfma_f32_32x32x16_bf16 {v(D,16)}, {a_}, {b_}, {v(D,16) if q else 0}')
    def pack(neg):
        for k in range(16): A(f'v_cvt_pk_bf16_f32 {v(X+k)}, {v(RE+k)}, {"-" if neg else ""}{v(IM+k)}')
    def tw(TC, TS):
        for k in range(0, 16, 2):
            pk_cmul_conj(A, RE + k, IM + k, TC + k, TS + k, tp + (k & 2))
            for kk in (k, k + 1): A(f'v_cvt_pk_bf16_f32 {v(X+kk)}, {v(RE+kk)}, {v(IM+kk)}')
    stage(FA, True, True)
    tw(T1C, T1S)
    stage(FB, False)
    A('s_waitcnt lgkmcnt(0)')
    for k in range(0, 16, 2):
        A(f'v_lshlrev_b32 {v(wu)}, 16, {v(Wd+k)}\nv_lshlrev_b32 {v(wu+1)}, 16, {v(Wd+k+1)}')
        A(f'v_and_b32 {v(Wd+k)}, 0xffff0000, {v(Wd+k)}\nv_and_b32 {v(Wd+k+1)}, 0xffff0000, {v(Wd+k+1)}')
        pk_cmul(A, RE + k, IM + k, wu, Wd + k, tp + (k & 2))
        for kk in (k, k + 1): A(f'v_cvt_pk_bf16_f32 {v(X+kk)}, {v(RE+kk)}, -{v(IM+kk)}')
    stage(FB, True)
    tw(T2C, T2S)
    stage(FT, True)
    for g in range(4):
        for r in range(4): A(f'v_cvt_pk_bf16_f32 {v(Wd+4*g+r)}, {v(RE+4*g+r)}, -{v(IM+4*g+r)}')
        A(f'buffer_store_dwordx4 {v(Wd+4*g,4)}, {v(so)}, s[20:23], s{33+g} offen sc1')
    A('s_add_u32 s31, s31, 8\ns_cmp_lt_u32 s31, 12\ns_cbranch_scc0 k2_end')
    A('s_branch k2_task')
    return V.hi

NST = 9; RING = 6; STB = 20480
def gen_gemm(A):
    V = VA()
    A(f's_mul_i32 s10, s5, 43\ns_lshr_b32 s10, s10, 8')
    A('s_mul_i32 s11, s10, 6\ns_sub_u32 s11, s5, s11')
    A('s_mul_i32 s24, s4, 6\ns_add_u32 s24, s24, s11')
    A('s_lshr_b32 s25, s24, 4\ns_and_b32 s26, s24, 15')
    lane = V(); t0 = V(); t1 = V()
    A(f'v_and_b32 {v(lane)}, 63, v0')
    A('s_cmp_ge_u32 s3, 4\ns_cbranch_scc1 k2_loader')
    srd(A, 12, 6, L.OFF_H, L.SZ_H); srd(A, 16, 6, L.OFF_PART, L.SZ_PART)
    ho = V()
    A(f'v_lshlrev_b32 {v(ho)}, 4, {v(lane)}')
    A('s_lshl_b32 s27, s26, 2\ns_add_u32 s27, s27, s3')
    A('s_mul_i32 s28, s27, 108\ns_mul_i32 s29, s25, 36\ns_add_u32 s28, s28, s29\ns_lshl_b32 s28, s28, 10')
    HW = 24
    HF = V(4 * HW, 4); ACC = V(80, 4); AF = V(40, 4)
    def hload(k):
        if k % 4 == 0 and k: A('s_add_u32 s28, s28, 4096')
        A(f'buffer_load_dwordx4 {v(HF+4*(k%HW),4)}, {v(ho)}, s[12:15], s28 offen offset:{(k%4)*1024}')
    for k in range(HW): hload(k)
    ab = [V(), V()]
    A(f'v_bfe_u32 {v(t0)}, v0, 2, 2')
    A(f'v_bfe_u32 {v(t1)}, v0, 5, 1')
    A(f'v_lshl_add_u32 {v(t0)}, {v(t1)}, 2, {v(t0)}')
    A(f'v_mul_u32_u24 {v(ab[0])}, 320, {v(t0)}')
    A(f'v_bfe_u32 {v(t0)}, v0, 4, 1')
    A(f'v_lshl_add_u32 {v(ab[0])}, {v(t0)}, 5, {v(ab[0])}')
    A(f'v_and_b32 {v(t0)}, 1, v0')
    A(f'v_lshl_add_u32 {v(ab[0])}, {v(t0)}, 4, {v(ab[0])}')
    A(f'v_bfe_u32 {v(t0)}, v0, 1, 1')
    A(f'v_lshl_add_u32 {v(ab[0])}, {v(t0)}, 3, {v(ab[0])}')
    A(f'v_add_u32 {v(ab[1])}, {3*STB}, {v(ab[0])}')
    so = V()
    A(f'v_bfe_u32 {v(t0)}, v0, 2, 3')
    A(f'v_mul_u32_u24 {v(so)}, 5120, {v(t0)}')
    A(f'v_and_b32 {v(t0)}, 3, v0')
    A(f'v_lshl_add_u32 {v(so)}, {v(t0)}, 4, {v(so)}')
    A(f'v_lshl_add_u32 {v(so)}, {v(t1)}, 6, {v(so)}')
    A(f's_mul_i32 s30, s25, {L.SZ_PART1}\ns_mul_i32 s31, s27, 40960\ns_add_u32 s30, s30, s31\ns_mul_i32 s31, s10, 1280\ns_add_u32 s30, s30, s31')
    def reads(k):
        st, q = divmod(k, 4); slot = st % RING
        base = ab[slot // 3]; off = (slot % 3) * STB + q * 5120
        for t in range(5):
            for e in range(2):
                A(f'ds_read_b64_tr_b16 {v(AF+(k&1)*20+4*t+2*e,2)}, {v(base)} offset:{off+e*2560+t*64}')
    NK = NST * 4
    A('s_barrier')
    reads(0)
    for k in range(NK):
        A('s_waitcnt lgkmcnt(0)')
        if k + 1 < NK:
            if (k + 1) % 4 == 0: A('s_barrier')
            reads(k + 1)
        issued = min(NK, HW + max(0, k))
        A(f's_waitcnt vmcnt({issued - k - 1})')
        for t in range(5):
            A(f'v_mfma_f32_32x32x16_bf16 {v(ACC+16*t,16)}, {v(AF+(k&1)*20+4*t,4)}, {v(HF+4*(k%HW),4)}, {v(ACC+16*t,16) if k else 0}')
        if k + HW < NK: hload(k + HW)
    for t in range(5):
        for gp in range(2):
            d = AF + (t * 2 + gp) * 4
            for i in range(4): A(f'v_cvt_pk_bf16_f32 {v(d+i)}, {v(ACC+16*t+8*gp+2*i)}, {v(ACC+16*t+8*gp+2*i+1)}')
            A(f'buffer_store_dwordx4 {v(d,4)}, {v(so)}, s[16:19], s30 offen offset:{t*256+gp*128} sc1')
    A('s_endpgm')
    hi = V.hi
    A.label('k2_loader')
    V = VA(4)
    srd(A, 12, 8, 0, 1728 * 1280)
    lo = V(5)
    for i in range(5):
        A(f'v_add_u32 {v(t0)}, {64*i}, {v(lane)}')
        A(f'v_mul_u32_u24 {v(t1)}, 3277, {v(t0)}')
        A(f'v_lshrrev_b32 {v(t1)}, 16, {v(t1)}')
        A(f'v_lshlrev_b32 {v(t0)}, 4, {v(t0)}')
        A(f'v_mul_u32_u24 {v(t1)}, 960, {v(t1)}')
        A(f'v_add_u32 {v(lo+i)}, {v(t0)}, {v(t1)}')
    A('s_sub_u32 s27, s3, 4')
    A('s_mul_i32 s28, s25, 36\ns_add_u32 s28, s28, s27\ns_mul_i32 s28, s28, 20480\ns_mul_i32 s29, s10, 320\ns_add_u32 s28, s28, s29')
    A('s_mul_i32 s29, s27, 5120')
    def issue(st):
        slot = st % RING
        for i in range(5):
            A(f's_add_u32 m0, s29, {slot*STB+i*1024}')
            A(f'buffer_load_dwordx4 {v(lo+i)}, s[12:15], s28 offen lds')
        A('s_add_u32 s28, s28, 81920')
    for st in range(RING): issue(st)
    issued = RING
    for st in range(NST):
        A(f's_waitcnt vmcnt({5*(issued-st-1)})')
        A('s_barrier')
        if st >= 1 and issued < NST: issue(issued); issued += 1
    A('s_endpgm')
    return hi

def gen_k2(A):
    header(A, 'k2_kernel')
    A('s_cmp_ge_u32 s2, 256\ns_cbranch_scc1 k2_end')
    A('s_load_dwordx2 s[6:7], s[0:1], 80\ns_load_dwordx2 s[8:9], s[0:1], 48')
    A('v_lshrrev_b32 v1, 6, v0')
    A('v_readfirstlane_b32 s3, v1')
    A('s_and_b32 s4, s2, 7\ns_lshr_b32 s5, s2, 3')
    A('s_waitcnt lgkmcnt(0)')
    A('s_cmp_lt_u32 s5, 24\ns_cbranch_scc1 k2_gemm')
    A('s_sub_u32 s4, s2, 192')
    n1 = gen_fft(A)
    A.label('k2_gemm')
    n2 = gen_gemm(A)
    A.label('k2_end')
    A('s_endpgm')
    return max(n1, n2)
```

```python
import numpy as np
from model import bf16
CP = 328
GP = CP * 16
OFF_H = 0;            SZ_H = 64 * 108 * 1024
OFF_A = 8 << 20;      SZ_A = 512 * GP
OFF_WT = 12 << 20
OFF_P = 16 << 20
OFF_PART = 20 << 20;  SZ_PART1 = 512 * 5120; SZ_PART = 3 * SZ_PART1
WS_USED = 32 << 20

def to_u16(x): return (bf16(x).view(np.uint32) >> 16).astype(np.uint16)
def from_u16(u): return (u.astype(np.uint32) << 16).view(np.float32)

def pack_pieces(Z, rowidx):
    out = np.zeros((256, 2, CP, 4, 2), np.uint16)
    for hf in range(2):
        z = Z[hf][rowidx]
        out[:, hf, :321, :, 0] = to_u16(z.real).transpose(0, 2, 1)
        out[:, hf, :321, :, 1] = to_u16(z.imag).transpose(0, 2, 1)
    return out
def unpack_pieces(u, rowidx):
    u = u.reshape(256, 2, CP, 4, 2)
    Z = np.zeros((2, 1024, 321), complex)
    for hf in range(2):
        z = from_u16(u[:, hf, :321, :, 0]).astype(np.float64) + 1j * from_u16(u[:, hf, :321, :, 1])
        Z[hf][rowidx] = z.transpose(0, 2, 1)
    return Z
G = np.arange(256)[:, None]; R4 = np.arange(4)[None]
IDX_A = 32 * (4 * (G >> 5) + R4) + (G & 31)
IDX_P = 4 * G + R4
def pack_wt(wr, wi):
    W = wr.astype(np.float64) + 1j * wi
    return pack_pieces(np.stack([W[0::2], W[1::2]]), IDX_A)
def h_index():
    st = np.arange(64)[:, None, None, None]; ch = np.arange(108)[None, :, None, None]
    l = np.arange(64)[None, None, :, None]; e = np.arange(8)[None, None, None, :]
    s = 32 * st + (l & 31) + 0 * ch + 0 * e
    f = 16 * ch + 8 * (e >> 2) + 4 * (l >> 5) + (e & 3) + 0 * st
    return s, f
def pack_h(h): s, f = h_index(); return to_u16(h[s, f])
def unpack_h(u):
    s, f = h_index(); h = np.zeros((2048, 1728), np.float32); h[s, f] = from_u16(u.reshape(64, 108, 64, 8)); return h
def pack_part(p):
    return to_u16(p.reshape(512, 4, 80, 8).transpose(0, 2, 1, 3))
def unpack_part(u): return from_u16(u.reshape(512, 80, 4, 8)).transpose(0, 2, 1, 3).reshape(2048, 640)
```

```python
import numpy as np
def bf16(x):
    x = np.asarray(x, dtype=np.float32)
    u = x.view(np.uint32).astype(np.uint64)
    r = ((u + 0x7FFF + ((u >> 16) & 1)) >> 16) << 16
    return r.astype(np.uint32).view(np.float32)
def cb(z):
    return bf16(z.real).astype(np.float64) + 1j * bf16(z.imag).astype(np.float64)
def e(x): return np.exp(2j * np.pi * x)

def make_inputs(seed=0):
    rng = np.random.default_rng(seed)
    S, D, F = 2048, 640, 1728
    rn = lambda *s: bf16(rng.standard_normal(s))
    x = bf16(rn(S, D) * 0.05)
    wr = bf16(bf16(rn(S, 321) * 3.2) * 0.02); wi = bf16(bf16(rn(S, 321) * 3.2) * 0.02)
    w1 = bf16(bf16(rn(D, F) * 3.2) * D ** -0.5); b1 = bf16(bf16(rn(F) * 3.2) * 0.01)
    w2 = bf16(bf16(rn(F, D) * 0.4) * F ** -0.5); b2 = bf16(bf16(rn(D) * 0.4) * 0.01)
    return x, wr, wi, w1, b1, w2, b2

def gelu(x): return 0.5 * x * (1 + np.tanh(np.sqrt(2 / np.pi) * (x + 0.044715 * x ** 3)))
def silu(x): return x / (1 + np.exp(-x))

def reference(x, wr, wi, w1, b1, w2, b2):
    x64 = x.astype(np.float64)
    m = bf16(x64.mean(-1, keepdims=True)); v = bf16(x64.var(-1, keepdims=True))
    sd = bf16(np.sqrt(bf16(v + np.float32(1e-5)).astype(np.float64)))
    xn = bf16(bf16(x - m) / sd).astype(np.float64)
    X = np.fft.rfft2(xn) * (wr.astype(np.float64) + 1j * wi)
    s = bf16(np.fft.irfft2(X, s=xn.shape))
    h = bf16(bf16(xn @ w1.astype(np.float64)) + b1)
    h = bf16(gelu(h.astype(np.float64)))
    y = bf16(bf16(h.astype(np.float64) @ w2.astype(np.float64)) + b2)
    g = bf16(silu(y.astype(np.float64)))
    return bf16(x + bf16(s * g)), s, g, xn

def stats(x):
    x64 = x.astype(np.float64)
    m = bf16(x64.mean(-1)); v = bf16(x64.var(-1))
    sd = bf16(np.sqrt(bf16(v + np.float32(1e-5)).astype(np.float64)))
    return m.astype(np.float64), 1.0 / sd.astype(np.float64)

def kcol(k2, k1):
    k = k1 + 20 * k2
    return np.where(k2 < 16, k, 640 - k)

def row_fft(x, rnd=True):
    R = cb if rnd else (lambda z: z)
    m, r = stats(x)
    xn = (x.astype(np.float64) - m[:, None]) * r[:, None]
    u = np.stack([xn[:1024] + xn[1024:], xn[:1024] - xn[1024:]])
    u = R(u + 0j).real.reshape(2, 1024, 20, 32)
    d1 = np.arange(20); k1 = np.arange(11); d2 = np.arange(32); k2 = np.arange(32)
    C1 = R(e(-np.outer(d1, k1) / 20))
    U = np.einsum('hsab,ak->hskb', u, C1)
    V = R(U * e(-np.outer(k1, d2) / 640))
    F2 = R(e(-np.outer(d2, k2) / 32))
    Ak = np.einsum('hskb,bj->hsjk', V, F2)
    Ak[:, :, 16:, :] = np.conj(Ak[:, :, 16:, :])
    Ak = R(Ak)
    A = np.zeros((2, 1024, 321), complex)
    K2, K1 = np.meshgrid(k2, k1, indexing='ij')
    kc = kcol(K2, K1)
    keep = (K2 < 16) | ((K1 >= 1) & (K1 <= 9)) | ((K2 == 16) & (K1 == 0))
    A[:, :, kc[keep]] = Ak[:, :, keep]
    assert len(set(kc[keep])) == 321 and keep.sum() == 321
    return A

def col_fft(A, wr, wi, rnd=True):
    R = cb if rnd else (lambda z: z)
    W = wr.astype(np.float64) + 1j * wi
    P = np.zeros_like(A)
    i = np.arange(32)
    for hf in range(2):
        a = A[hf].reshape(32, 32, 321)
        Fa = R(e(-np.outer(i, 2 * i + hf) / 64))
        Fb = R(e(-np.outer(i, i) / 32))
        tw = e(-np.outer(i, 2 * i + hf) / 2048)
        Z = R(np.einsum('abk,at->btk', a, Fa) * tw[:, :, None])
        X = np.einsum('ub,btk->utk', Fb, Z)
        Wk = W[hf::2].reshape(32, 32, 321)
        Yc = R(np.conj(X * Wk))
        Zc = R(np.einsum('utk,ub->tbk', Yc, Fb) * tw.T[:, :, None])
        Pc = np.einsum('tbk,at->abk', Zc, Fa)
        P[hf] = R(np.conj(Pc)).reshape(1024, 321)
    return P

def inv_row(P, rnd=True):
    R = cb if rnd else (lambda z: z)
    d1 = np.arange(20); k1 = np.arange(11); d2 = np.arange(32); k2 = np.arange(32)
    K2, K1 = np.meshgrid(k2, k1, indexing='ij')
    Pk = P[:, :, kcol(K2, K1)]
    Pk[:, :, 16:, :] = np.conj(Pk[:, :, 16:, :])
    F2 = R(e(np.outer(k2, d2) / 32))
    V = np.einsum('hsjk,jb->hskb', Pk, F2)
    U = R(V * e(np.outer(k1, d2) / 640) / (2048 * 640))
    w = np.where((k1 == 0) | (k1 == 10), 1.0, 2.0)
    C = R(e(np.outer(k1, d1) / 20)) * w[:, None]
    p = np.einsum('hskb,ka->hsab', U.real, C.real) - np.einsum('hskb,ka->hsab', U.imag, C.imag)
    p = p.reshape(2, 1024, 640)
    return np.concatenate([p[0] + p[1], p[0] - p[1]])

def mlp(x, w1, b1, w2, b2):
    m, r = stats(x)
    acc = x.astype(np.float64) @ w1.astype(np.float64)
    c = w1.astype(np.float64).sum(0)
    u = r[:, None] * acc - (r * m)[:, None] * c[None] + b1
    h = bf16(gelu(u)).astype(np.float64)
    parts = [bf16(h[:, 864 * i:864 * i + 864] @ w2[864 * i:864 * i + 864].astype(np.float64)).astype(np.float64) for i in range(2)]
    y = sum(parts) + b2
    return silu(y), h, parts

if __name__ == '__main__':
    inp = make_inputs(0)
    x, wr, wi, w1, b1, w2, b2 = inp
    ref, s_ref, g_ref, xn = reference(*inp)
    for rnd in (False, True):
        A = row_fft(x, rnd); P = col_fft(A, wr, wi, rnd); s = inv_row(P, rnd)
        print('rnd', rnd, 's err max', np.abs(s - s_ref).max(), 'rms', np.sqrt(((s - s_ref) ** 2).mean()), 's rms', s_ref.std())
    g, h, parts = mlp(x, w1, b1, w2, b2)
    print('g err max', np.abs(g - g_ref).max(), 'rms', np.sqrt(((g - g_ref) ** 2).mean()))
    out = bf16(x + s * g)
    print('out err max', np.abs(out - ref).max(), 'ref max', np.abs(ref).max(), 'thr', 8 * 2 ** -8 * np.abs(ref).max())
```

```python
import sys, math
from asmlib import *
import layouts as L

NAME = 'recurrent_scan__spectral_gfnet__dense_activation_gelu__prompt'
XB = 2048 * 640 * 2
LOG2E = 1.4426950408889634

class VA:
    def __init__(self, start=1): self.n = start; self.hi = start
    def __call__(self, c=1, al=None):
        al = al or (1 if c == 1 else 2)
        self.n = (self.n + al - 1) // al * al
        r = self.n; self.n += c; self.hi = max(self.hi, self.n); return r
    def mark(self): return self.n
    def reset(self, m): self.n = m

def srd(A, d, base, off, size):
    if off:
        A(f's_add_u32 {s(d)}, {s(base)}, {off}')
        A(f's_addc_u32 {s(d+1)}, {s(base+1)}, 0')
    else:
        A(f's_mov_b32 {s(d)}, {s(base)}')
        A(f's_mov_b32 {s(d+1)}, {s(base+1)}')
    A(f's_mov_b32 {s(d+2)}, {size}')
    A(f's_mov_b32 {s(d+3)}, 0x00020000')

def header(A, name):
    A(f'.globl {name}\n.p2align 8\n.type {name},@function')
    A.label(name)

def desc(name, nv, ns=102):
    acc = (nv + 3) // 4 * 4
    return f'''.amdhsa_kernel {name}
  .amdhsa_next_free_vgpr {nv}
  .amdhsa_next_free_sgpr {ns}
  .amdhsa_accum_offset {acc}
  .amdhsa_group_segment_fixed_size 0
  .amdhsa_kernarg_size 88
  .amdhsa_user_sgpr_count 2
  .amdhsa_user_sgpr_kernarg_segment_ptr 1
  .amdhsa_system_sgpr_workgroup_id_x 1
  .amdhsa_float_denorm_mode_32 3
.end_amdhsa_kernel
'''

def unpack(A, dlo, dhi, src):
    A(f'v_lshlrev_b32 {v(dlo)}, 16, {v(src)}')
    A(f'v_and_b32 {v(dhi)}, 0xffff0000, {v(src)}')

def cmul(A, dr, di, ar, ai, br, bi, t):
    A(f'v_mul_f32 {v(t)}, {v(ai)}, {v(bi)}')
    A(f'v_mul_f32 {v(di)}, {v(ai)}, {v(br)}')
    A(f'v_fmac_f32 {v(di)}, {v(ar)}, {v(bi)}')
    A(f'v_fma_f32 {v(dr)}, {v(ar)}, {v(br)}, -{v(t)}')

K3_LDS = 20480 + 10240
def gen_k3(A):
    header(A, 'k3_kernel')
    V = VA()
    A('s_cmp_ge_u32 s2, 256\ns_cbranch_scc1 k3_end')
    A('s_load_dwordx2 s[4:5], s[0:1], 0\ns_load_dwordx4 s[8:11], s[0:1], 56\ns_load_dwordx2 s[6:7], s[0:1], 80')
    lane, g, j, tp, t0, t1 = V(), V(), V(), V(), V(), V()
    A(f'v_lshrrev_b32 {v(t0)}, 6, v0')
    A(f'v_and_b32 {v(lane)}, 63, v0')
    A(f'v_readfirstlane_b32 s3, {v(t0)}')
    A(f'v_lshrrev_b32 {v(g)}, 4, {v(lane)}')
    A(f'v_and_b32 {v(j)}, 15, v0')
    A('s_cmp_ge_u32 s3, 5\ns_cselect_b32 s32, 1, 0')
    A('s_mul_i32 s33, s32, 320')
    A(f'v_subrev_u32 {v(tp)}, s33, v0')
    A('s_waitcnt lgkmcnt(0)')
    srd(A, 12, 4, 0, XB); srd(A, 16, 10, 0, XB); srd(A, 20, 6, L.OFF_P, L.SZ_A); srd(A, 24, 6, L.OFF_PART, L.SZ_PART); srd(A, 28, 8, 0, 1280)
    pd = V(8, 4)
    A('s_cmp_ge_u32 s3, 8\ns_cbranch_scc1 k3_noP')
    a0, a1 = V(), V()
    A(f'v_min_u32 {v(t0)}, 10, {v(j)}')
    A(f'v_lshlrev_b32 {v(t0)}, 4, {v(t0)}')
    A(f'v_mul_u32_u24 {v(t1)}, 1280, {v(g)}')
    A(f'v_add_u32 {v(a0)}, {v(t0)}, {v(t1)}')
    A(f'v_sub_u32 {v(a1)}, 4160, {v(a0)}')
    A('s_lshr_b32 s34, s3, 2\ns_lshl_b32 s35, s2, 1\ns_add_u32 s34, s34, s35')
    A(f's_mul_i32 s34, s34, {L.GP}\ns_and_b32 s35, s3, 3\ns_lshl_b32 s35, s35, 2\ns_add_u32 s34, s34, s35')
    for c in range(4): A(f'buffer_load_dword {v(pd+c)}, {v(a0)}, s[20:23], s34 offen offset:{c*320}')
    for c in range(4): A(f'buffer_load_dword {v(pd+4+c)}, {v(a1)}, s[20:23], s34 offen offset:{(3-c)*320}')
    A.label('k3_noP')
    off16 = V(); pt = V(12, 4); bb = V(4, 4); xx = V(4, 4)
    A(f'v_lshlrev_b32 {v(off16)}, 4, {v(tp)}')
    A('s_lshl_b32 s36, s32, 8\ns_add_u32 s36, s36, s2\ns_mul_i32 s36, s36, 5120')
    for ks in range(3):
        if ks: A(f's_add_u32 s{37+ks}, s36, {ks*L.SZ_PART1}')
    for ks in range(3):
        A(f'buffer_load_dwordx4 {v(pt+4*ks,4)}, {v(off16)}, s[24:27], s{37+ks if ks else 36} offen')
    A(f'v_lshrrev_b32 {v(t0)}, 2, {v(tp)}')
    A(f'v_lshlrev_b32 {v(t0)}, 4, {v(t0)}')
    A(f'buffer_load_dwordx4 {v(bb,4)}, {v(t0)}, s[28:31], 0 offen')
    A(f'buffer_load_dwordx4 {v(xx,4)}, {v(off16)}, s[12:15], s36 offen')
    gaddr = V()
    A(f'v_and_b32 {v(t1)}, 3, {v(tp)}')
    A(f'v_mul_u32_u24 {v(t1)}, 1280, {v(t1)}')
    A(f'v_add_u32 {v(gaddr)}, {v(t0)}, {v(t1)}')
    A('s_mul_i32 s40, s32, 5120\ns_add_u32 s40, s40, 20480')
    A(f'v_add_u32 {v(gaddr)}, s40, {v(gaddr)}')
    A('s_cmp_ge_u32 s3, 8\ns_cbranch_scc1 k3_g')
    mk = V.mark()
    fj, fg4, th, st, sgn = V(), V(), V(), V(), V()
    cs = V(4); sn = V(4); cq = V(4); sq_ = V(4)
    B1 = V(32, 4)
    def b1(T, q, part): return B1 + ((T * 2 + q) * 2 + part) * 4
    A(f'v_cvt_f32_u32 {v(fj)}, {v(j)}')
    A(f'v_lshlrev_b32 {v(t0)}, 2, {v(g)}')
    A(f'v_cvt_f32_u32 {v(fg4)}, {v(t0)}')
    A(f'v_mul_f32 {v(st)}, {fh(1/32)}, {v(fj)}')
    A(f'v_mul_f32 {v(th)}, {v(st)}, {v(fg4)}')
    A(f'v_lshlrev_b32 {v(sgn)}, 31, {v(j)}')
    for c in range(4):
        A(f'v_cos_f32 {v(cs+c)}, {v(th)}\nv_sin_f32 {v(sn+c)}, {v(th)}')
        if c < 3: A(f'v_add_f32 {v(th)}, {v(th)}, {v(st)}')
    for c in range(4):
        A(f'v_xor_b32 {v(cq+c)}, {v(sgn)}, {v(cs+c)}\nv_xor_b32 {v(sq_+c)}, {v(sgn)}, {v(sn+c)}')
    for T in range(2):
        for c in range(4):
            ng = (T == 1 and (c & 1))
            P_ = '-' if ng else ''; N_ = '' if ng else '-'
            A(f'v_cvt_pk_bf16_f32 {v(b1(T,0,0)+c)}, {P_}{v(cs+c)}, {N_}{v(sn+c)}')
            A(f'v_cvt_pk_bf16_f32 {v(b1(T,0,1)+c)}, {P_}{v(sn+c)}, {P_}{v(cs+c)}')
            A(f'v_cvt_pk_bf16_f32 {v(b1(T,1,0)+c)}, {P_}{v(cq+c)}, {P_}{v(sq_+c)}')
            A(f'v_cvt_pk_bf16_f32 {v(b1(T,1,1)+c)}, {P_}{v(sq_+c)}, {N_}{v(cq+c)}')
    w = V(4)
    for r in range(4):
        A(f'v_add_u32 {v(t0)}, {r}, {v(g)}' if False else f'v_lshl_add_u32 {v(t0)}, {v(g)}, 2, {r}')
        A(f'v_cmp_gt_u32 vcc, 10, {v(t0)}')
        A(f'v_cndmask_b32 {v(w+r)}, 0, 2.0, vcc')
        if r == 0:
            A(f'v_cmp_eq_u32 vcc, 0, {v(t0)}')
            A(f'v_cndmask_b32 {v(w+r)}, {v(w+r)}, 1.0, vcc')
        if r == 2:
            A(f'v_cmp_eq_u32 vcc, 10, {v(t0)}')
            A(f'v_cndmask_b32 {v(w+r)}, {v(w+r)}, 1.0, vcc')
    twc = V(8); tws = V(8); B2 = V(8, 4)
    fjT = V()
    for T in range(2):
        if T: A(f'v_add_f32 {v(fjT)}, {fh(16.0)}, {v(fj)}')
        src = fjT if T else fj
        A(f'v_mul_f32 {v(st)}, {fh(1/640)}, {v(src)}')
        A(f'v_mul_f32 {v(th)}, {v(st)}, {v(fg4)}')
        for r in range(4):
            A(f'v_cos_f32 {v(twc+4*T+r)}, {v(th)}\nv_sin_f32 {v(tws+4*T+r)}, {v(th)}')
            if r < 3: A(f'v_add_f32 {v(th)}, {v(th)}, {v(st)}')
        A(f'v_mul_f32 {v(st)}, {fh(1/20)}, {v(src)}')
        A(f'v_mul_f32 {v(th)}, {v(st)}, {v(fg4)}')
        for r in range(4):
            A(f'v_cos_f32 {v(cs+r)}, {v(th)}\nv_sin_f32 {v(sn+r)}, {v(th)}')
            if r < 3: A(f'v_add_f32 {v(th)}, {v(th)}, {v(st)}')
        for r in range(4):
            A(f'v_mul_f32 {v(twc+4*T+r)}, {v(twc+4*T+r)}, {v(w+r)}\nv_mul_f32 {v(tws+4*T+r)}, {v(tws+4*T+r)}, {v(w+r)}')
            A(f'v_cvt_pk_bf16_f32 {v(B2+4*T+r)}, {v(cs+r)}, -{v(sn+r)}')
    pw = V()
    A(f'v_lshlrev_b32 {v(pw)}, 7, {v(j)}')
    A(f'v_lshl_add_u32 {v(pw)}, {v(g)}, 4, {v(pw)}')
    A('s_mul_i32 s41, s3, 2560')
    A(f'v_add_u32 {v(pw)}, s41, {v(pw)}')
    D = V(16, 4)
    A('s_waitcnt vmcnt(5)')
    for q in range(2):
        for T in range(2):
            for part in range(2):
                d = D + (T * 2 + part) * 4
                A(f'v_mfma_f32_16x16x32_bf16 {v(d,4)}, {v(pd+4*q,4)}, {v(b1(T,q,part),4)}, {v(d,4) if q else 0}')
    U = V(8, 4)
    for T in range(2):
        for r in range(4):
            re = D + T * 8 + r; im = re + 4
            cmul(A, re, im, re, im, twc + 4 * T + r, tws + 4 * T + r, t0 if r & 1 else t1)
            A(f'v_cvt_pk_bf16_f32 {v(U+4*T+r)}, {v(re)}, {v(im)}')
    E = V(16, 4)
    for T in range(2):
        for T1 in range(2):
            A(f'v_mfma_f32_16x16x32_bf16 {v(E+(T*2+T1)*4,4)}, {v(U+4*T,4)}, {v(B2+4*T1,4)}, 0')
    A(f'v_cmp_gt_u32 vcc, 4, {v(j)}')
    for T in range(2): A(f'ds_write_b128 {v(pw)}, {v(E+(T*2)*4,4)} offset:{64*T}')
    A('s_and_saveexec_b64 s[42:43], vcc')
    for T in range(2): A(f'ds_write_b128 {v(pw)}, {v(E+(T*2+1)*4,4)} offset:{2048+64*T}')
    A('s_mov_b64 exec, s[42:43]')
    V.reset(mk)
    A.label('k3_g')
    y = V(8, 2); tt = V(8, 2); gp = V(4, 4)
    A('s_waitcnt vmcnt(1)')
    for i in range(4):
        unpack(A, y + 2 * i, y + 2 * i + 1, bb + i)
    for ks in range(3):
        for i in range(4):
            unpack(A, tt + 2 * i, tt + 2 * i + 1, pt + 4 * ks + i)
            A(f'v_pk_add_f32 {v(y+2*i,2)}, {v(y+2*i,2)}, {v(tt+2*i,2)}')
    for i in range(8): A(f'v_mul_f32 {v(tt+i)}, {fh(-LOG2E)}, {v(y+i)}')
    for i in range(8): A(f'v_exp_f32 {v(tt+i)}, {v(tt+i)}')
    SC = 2048.0 * 640.0
    A(f's_mov_b32 s44, {fh(SC)}')
    for i in range(8): A(f'v_fma_f32 {v(tt+i)}, {v(tt+i)}, s44, s44')
    for i in range(8): A(f'v_rcp_f32 {v(tt+i)}, {v(tt+i)}')
    for i in range(4): A(f'v_pk_mul_f32 {v(y+2*i,2)}, {v(y+2*i,2)}, {v(tt+2*i,2)}')
    for i in range(4): A(f'v_cvt_pk_bf16_f32 {v(gp+i)}, {v(y+2*i)}, {v(y+2*i+1)}')
    A(f'ds_write_b128 {v(gaddr)}, {v(gp,4)}')
    ra = V(); rg = V()
    A(f'v_lshlrev_b32 {v(ra)}, 5, {v(tp)}')
    A(f'v_add_u32 {v(rg)}, s40, {v(off16)}')
    A(f's_cmp_eq_u32 s32, 0\ns_cselect_b32 s45, {fh(1.0)}, {fh(-1.0)}')
    A('s_waitcnt lgkmcnt(0)\ns_barrier')
    pp = V(8, 4); qq = V(8, 4)
    A(f'ds_read_b128 {v(pp,4)}, {v(ra)}\nds_read_b128 {v(pp+4,4)}, {v(ra)} offset:16')
    A(f'ds_read_b128 {v(qq,4)}, {v(ra)} offset:10240\nds_read_b128 {v(qq+4,4)}, {v(ra)} offset:10256')
    A(f'ds_read_b128 {v(gp,4)}, {v(rg)}')
    A('s_waitcnt vmcnt(0)')
    for i in range(4): unpack(A, y + 2 * i, y + 2 * i + 1, xx + i)
    A('s_waitcnt lgkmcnt(0)')
    for i in range(8): A(f'v_fmac_f32 {v(pp+i)}, s45, {v(qq+i)}')
    for i in range(4): unpack(A, tt + 2 * i, tt + 2 * i + 1, gp + i)
    for i in range(8): A(f'v_fmac_f32 {v(y+i)}, {v(pp+i)}, {v(tt+i)}')
    for i in range(4): A(f'v_cvt_pk_bf16_f32 {v(gp+i)}, {v(y+2*i)}, {v(y+2*i+1)}')
    A(f'buffer_store_dwordx4 {v(gp,4)}, {v(off16)}, s[16:19], s36 offen')
    A.label('k3_end')
    A('s_endpgm')
    return V.hi

def main(out, kernels):
    A = Asm()
    launches = []; descs = []
    for k in kernels:
        if k == 'k1':
            from gen_k1 import gen_k1, K1_LDS
            nv = gen_k1(A); launches.append(f'; @launch kernel=k1_kernel grid=(256,1,1) block=(512,1,1) lds={K1_LDS}'); descs.append(desc('k1_kernel', nv))
        if k == 'k2':
            from gen_k2 import gen_k2, K2_LDS
            nv = gen_k2(A); launches.append(f'; @launch kernel=k2_kernel grid=(256,1,1) block=(512,1,1) lds={K2_LDS}'); descs.append(desc('k2_kernel', nv))
        if k == 'k3':
            nv = gen_k3(A); launches.append(f'; @launch kernel=k3_kernel grid=(256,1,1) block=(640,1,1) lds={K3_LDS}'); descs.append(desc('k3_kernel', nv))
        print(k, 'vgprs', nv, file=sys.stderr)
    body = A.finalize()
    txt = '; generated by dev/gen.py (own generator)\n' + '\n'.join(launches) + '\n'
    txt += '.amdgcn_target "amdgcn-amd-amdhsa--gfx950"\n.text\n' + body
    txt += '.section .rodata,"a"\n' + ''.join('.p2align 6\n' + d for d in descs)
    open(out, 'w').write(txt)

if __name__ == '__main__':
    main(sys.argv[1], sys.argv[2:])
```

```python
import re, struct

def v(n, c=1): return f"v{n}" if c == 1 else f"v[{n}:{n+c-1}]"
def s(n, c=1): return f"s{n}" if c == 1 else f"s[{n}:{n+c-1}]"
def a(n, c=1): return f"a{n}" if c == 1 else f"a[{n}:{n+c-1}]"
def f2u(x): return struct.unpack('<I', struct.pack('<f', x))[0]
def fh(x): return f"0x{f2u(x):08x}"

_reg = re.compile(r'^(-|\|)?(abs\()?([vas])(\d+|\[(\d+):(\d+)\])\)?\|?$')
def regs(op):
    op = op.strip()
    if op in ('vcc', 'exec', 'm0', 'scc'): return {(op, 0)}
    if op in ('vcc_lo', 'vcc_hi'): return {('vcc', 0)}
    if op in ('exec_lo', 'exec_hi'): return {('exec', 0)}
    m = _reg.match(op)
    if not m: return set()
    k = m.group(3)
    if m.group(5) is not None: return {(k, i) for i in range(int(m.group(5)), int(m.group(6)) + 1)}
    return {(k, int(m.group(4)))}

TRANS = ('v_exp_f32', 'v_log_f32', 'v_rcp_f32', 'v_rsq_f32', 'v_sqrt_f32', 'v_sin_f32', 'v_cos_f32', 'v_rcp_iflag_f32')

class Ins:
    def __init__(self, text):
        self.text = text
        t = text.split(';')[0].strip()
        self.label = t[:-1] if t.endswith(':') else None
        self.directive = t.startswith('.') and not self.label
        self.empty = (t == '')
        self.op = ''
        self.w = set(); self.r = set()
        self.kind = 'none'
        if self.label or self.directive or self.empty: return
        parts = t.split(None, 1)
        op = parts[0]; self.op = op
        rest = parts[1] if len(parts) > 1 else ''
        ops = []; depth = 0; cur = ''
        for ch in rest:
            if ch in '[(': depth += 1
            if ch in '])': depth -= 1
            if ch == ',' and depth == 0: ops.append(cur.strip()); cur = ''
            else: cur += ch
        if cur.strip(): ops.append(cur.strip())
        mods = ''
        if ops:
            lp = ops[-1].split(None, 1)
            ops[-1] = lp[0]; mods = lp[1] if len(lp) > 1 else ''
        self.ops = ops; self.mods = mods
        R = [regs(o) for o in ops]
        base = re.sub(r'_(e32|e64|dpp|sdwa)$', '', op)
        self.base = base
        self.passes = 0; self.dpp = False; self.wide_store = set(); self.A = self.B = self.C = set()
        if op.startswith('v_mfma'):
            self.kind = 'mfma'
            self.passes = 8 if '32x32x16' in op else 4 if '16x16x32' in op else 2 if '4x4x4' in op else None
            assert self.passes, op
            self.w = R[0]; self.A = R[1]; self.B = R[2]; self.C = R[3]; self.r = R[1] | R[2] | R[3]
        elif op.startswith('v_'):
            self.kind = 'valu'
            nd = 1
            if base in ('v_add_co_u32', 'v_sub_co_u32', 'v_addc_co_u32', 'v_subb_co_u32', 'v_mad_u64_u32', 'v_div_scale_f32'): nd = 2
            if base == 'v_nop': nd = 0
            for x in R[:nd]: self.w |= x
            for x in R[nd:]: self.r |= x
            if base in ('v_fmac_f32', 'v_dot2c_f32_bf16', 'v_pk_fmac_f16', 'v_writelane_b32'): self.r |= R[0]
            if 'swap' in base: self.w |= R[1]; self.r |= R[0]
            if op.endswith('_dpp') or 'row_' in mods or 'quad_perm' in mods: self.dpp = True; self.r |= R[0]
            if base.startswith('v_cmpx'): self.w |= {('exec', 0)}
        elif op.startswith('buffer_') or op.startswith('global_') or op.startswith('flat_'):
            self.kind = 'vmem'
            lds = (' lds' in ' ' + mods) or '_lds_' in op
            self.lds = lds
            if 'store' in op or 'atomic' in op:
                for x in R: self.r |= x
                if op.endswith('x4') or op.endswith('x3'):
                    self.wide_store = R[0] if op.startswith('buffer_') else R[1]
                if 'atomic' in op and 'sc0' in mods and op.startswith('buffer_'): self.w |= R[0]
            elif op in ('buffer_inv', 'buffer_wbl2'):
                pass
            elif lds:
                for x in R: self.r |= x
                self.r |= {('m0', 0)}
            else:
                self.w = R[0]
                for x in R[1:]: self.r |= x
        elif op.startswith('ds_'):
            self.kind = 'ds'
            if op.startswith('ds_read') or 'permute' in op or 'swizzle' in op or '_rtn' in op:
                self.w = R[0]
                for x in R[1:]: self.r |= x
            else:
                for x in R: self.r |= x
        elif op.startswith('s_'):
            self.kind = 'salu'
            if op.startswith(('s_cmp', 's_cbranch', 's_branch', 's_waitcnt', 's_barrier', 's_nop', 's_endpgm', 's_sleep', 's_setprio', 's_bitcmp')):
                for x in R: self.r |= x
            else:
                if R: self.w = R[0]
                for x in R[1:]: self.r |= x
                if 'saveexec' in op: self.w |= {('exec', 0)}
        else:
            raise ValueError('unknown instruction ' + text)
    def states(self):
        if self.label or self.directive or self.empty: return 0
        if self.op == 's_nop': return int(self.ops[0], 0) + 1
        return 1

def vg(x): return {r for r in x if r[0] in 'va'}
def sg(x): return {r for r in x if r[0] in ('s', 'vcc')}

def need(p, c):
    n = 0
    if p.kind == 'valu':
        pw = vg(p.w)
        if pw:
            if c.kind == 'mfma' and pw & c.r: n = max(n, 2)
            if c.kind == 'valu':
                if c.dpp and pw & c.r: n = max(n, 2)
                if 'permlane' in c.base and pw & c.r: n = max(n, 2)
                if c.base in ('v_readlane_b32', 'v_readfirstlane_b32') and pw & c.r: n = max(n, 1)
            if p.base in TRANS and pw & c.r and not (c.kind == 'valu' and c.base in TRANS): n = max(n, 1)
            if p.base.startswith('v_dot'):
                if c.kind == 'valu' and c.base == p.base:
                    srcab = set()
                    for o in c.ops[1:3]: srcab |= regs(o)
                    if pw & srcab: n = max(n, 3)
                elif pw & (c.r | c.w): n = max(n, 3)
            if p.op.endswith('_sdwa') and c.kind in ('valu', 'mfma') and pw & (c.r | c.w): n = max(n, 1)
        ps = sg(p.w)
        if ps:
            if c.kind == 'valu' and ps & c.r:
                n = max(n, 4 if c.base in ('v_readlane_b32', 'v_writelane_b32') else 2)
            if c.kind == 'vmem' and ps & c.r: n = max(n, 5)
            if c.kind == 'salu' and ps & c.r: n = max(n, 2)
            if c.kind == 'salu' and c.op.startswith('s_cbranch_vcc') and ('vcc', 0) in ps: n = max(n, 5)
        if ('exec', 0) in p.w and c.kind in ('valu', 'mfma'): n = max(n, 5)
    elif p.kind == 'mfma':
        P = p.passes
        if c.kind == 'mfma':
            if p.w & c.C:
                if not (p.w == c.C and c.passes == P): n = max(n, P + 2)
                elif P == 2: n = max(n, 2)
            if p.w & (c.A | c.B): n = max(n, P + 4)
            if p.w & c.w and not (p.w == c.w and c.passes == P): n = max(n, P + 2)
        elif c.kind in ('valu', 'vmem', 'ds'):
            if p.w & (c.r | c.w): n = max(n, P + 4)
            if vg(p.C) & c.w: n = max(n, P - 1)
    elif p.kind == 'salu':
        if ('m0', 0) in p.w and c.kind == 'vmem' and ('m0', 0) in c.r: n = max(n, 1)
    elif p.kind == 'vmem':
        if p.wide_store & c.w: n = max(n, 2 if c.kind in ('valu', 'mfma') else 1)
    return n

WINDOW = 14

class Asm:
    def __init__(self): self.items = []
    def __call__(self, text):
        for line in text.split('\n'):
            line = line.strip()
            if line: self.items.append(Ins(line))
    def label(self, name): self.items.append(Ins(name + ':'))
    def comment(self, t): self.items.append(Ins('; ' + t))
    prof = False
    OFF_PROF = 40 << 20
    def stamp(self, i):
        if not self.prof: return
        if i == 0: self('s_memtime s[88:89]')
        if i == 3: self('s_memtime s[92:93]')
        if i == 5: self('s_memtime s[94:95]')
        self(f's_memrealtime s[{70+2*i}:{71+2*i}]')
        self('s_waitcnt lgkmcnt(0)')
    def end(self, kid, nst=0, nall=None):
        if self.prof:
            self('s_waitcnt vmcnt(0)')
            self('s_memtime s[100:101]')
            self.stamp(nst)
            self('s_sub_u32 s88, s100, s88')
            self(f's_add_u32 s64, s6, {self.OFF_PROF}\ns_addc_u32 s65, s7, 0\ns_mov_b32 s66, 0x1000000\ns_mov_b32 s67, 0x00020000')
            self(f's_lshl_b32 s68, s2, 4\ns_add_u32 s68, s68, s3\ns_add_u32 s68, s68, {kid*4096}\ns_lshl_b32 s68, s68, 6')
            self('v_mov_b32 v0, 0')
            for i in range((nall or nst) + 1):
                self(f'v_mov_b32 v1, s{70+2*i}')
                self(f'buffer_store_dword v1, v0, s[64:67], s68 offen offset:{4*i}')
            self('s_sub_u32 s92, s94, s92')
            self('v_mov_b32 v1, s92')
            self('buffer_store_dword v1, v0, s[64:67], s68 offen offset:56')
            self('v_mov_b32 v1, s88')
            self('buffer_store_dword v1, v0, s[64:67], s68 offen offset:60')
        self('s_endpgm')

    def _deficit(self, hist, seq):
        worst = 0; off = 0
        for c in seq:
            if off > WINDOW: break
            if c.states() == 0: continue
            for p, d in hist:
                k = need(p, c) - (d + off)
                worst = max(worst, k)
            if c.op in ('s_branch', 's_endpgm'): break
            off += c.states()
        return worst

    def finalize(self):
        items = self.items
        labels = {it.label: i for i, it in enumerate(items) if it.label}
        out = []
        hist = []
        def push(it):
            nonlocal hist
            st = it.states()
            out.append(it)
            if st:
                hist = [(p, d + st) for p, d in hist if d + st <= WINDOW]
                hist.append((it, 0))
        def nops(k):
            while k > 0:
                n = min(k, 16); push(Ins(f's_nop {n-1}')); k -= n
        for i, it in enumerate(items):
            if it.states() == 0:
                out.append(it); continue
            nops(self._deficit(hist, [it]))
            if it.op.startswith('s_cbranch') or it.op == 's_branch':
                tgt = labels[it.ops[0]]
                h2 = [(p, d + 1) for p, d in hist]
                nops(self._deficit(h2, items[tgt:tgt + 40]))
            push(it)
            if it.op in ('s_branch', 's_endpgm'): hist = []
        return '\n'.join(('' if (it.label or it.directive) else '    ') + it.text for it in out) + '\n'
```

```python
import math
from asmlib import *
import layouts as L
from gen import VA, srd, header, unpack, XB, LOG2E
from gen_k2 import pk_cmul_conj

STAT = 131072
K1_LDS = STAT + 4096
import os
STATS = os.environ.get('STATS', 'B')
PREFETCH_W2 = True
SCHED = lambda k: 2 if k < 8 else 1
BC = 'op_sel_hi:[1,0]'
def rnd_bf16(A, d, src):
    A(f'v_cvt_pk_bf16_f32 {v(d)}, {v(src)}, {v(src)}')
    A(f'v_and_b32 {v(d)}, 0xffff0000, {v(d)}')
def rstd(A, d, var):
    A(f'v_max_f32 {v(d)}, 0, {v(var)}')
    rnd_bf16(A, d, d)
    A(f'v_add_f32 {v(d)}, {fh(1e-5)}, {v(d)}')
    rnd_bf16(A, d, d)
    A(f'v_sqrt_f32 {v(d)}, {v(d)}')
    rnd_bf16(A, d, d)
    A(f'v_rcp_f32 {v(d)}, {v(d)}')
def allred16(A, x):
    for n in (8, 4, 2, 1):
        A(f'v_add_f32_dpp {v(x)}, {v(x)}, {v(x)} row_ror:{n} row_mask:0xf bank_mask:0xf')

def gen_fft(A):
    V = VA()
    A.label('k1_fft')
    srd(A, 12, 8, 0, XB); srd(A, 16, 40, 0, 2048 * 642); srd(A, 20, 42, 0, 2048 * 642)
    srd(A, 24, 6, L.OFF_A, L.SZ_A); srd(A, 28, 6, L.OFF_WT, L.SZ_A)
    A('s_lshl_b32 s32, s4, 3\ns_add_u32 s32, s32, s3')
    A('s_lshr_b32 s33, s32, 5\ns_lshl_b32 s33, s33, 7\ns_and_b32 s34, s32, 31\ns_add_u32 s33, s33, s34')
    A(f's_mul_i32 s34, s33, 1280\ns_add_u32 s35, s34, {1024*1280}')
    lane, g, j, t0, t1, t2 = V(), V(), V(), V(), V(), V()
    A(f'v_and_b32 {v(lane)}, 63, v0')
    A(f'v_lshrrev_b32 {v(g)}, 4, {v(lane)}')
    A(f'v_and_b32 {v(j)}, 15, v0')
    A(f'v_mul_u32_u24 {v(t0)}, {32*1280}, {v(g)}')
    A(f'v_lshl_add_u32 {v(t0)}, {v(j)}, 4, {v(t0)}')
    XP = V(40, 4)
    for b in range(2):
        for i in range(5): A(f'buffer_load_dwordx4 {v(XP+20*b+4*i,4)}, {v(t0)}, s[12:15], s{34+b} offen offset:{256*i}')
    WL = V(48, 4)
    def wl(cc, pl, r): return WL + ((cc * 2 + pl) * 4 + r) * 2
    A(f'v_lshlrev_b32 {v(t1)}, 3, {v(lane)}')
    A('s_mul_i32 s36, s33, 1284')
    A('s_barrier')
    for r in range(4):
        if r: A(f's_add_u32 s36, s36, {32*1284}')
        for pl in range(2):
            for cc in range(3):
                A(f'buffer_load_dwordx2 {v(wl(cc,pl,r),2)}, {v(t1)}, s[{16+4*pl}:{19+4*pl}], s36 offen offset:{512*cc}')
    C1 = V(4, 4); S1 = V(4, 4); TC = V(8, 2); TS = V(8, 2); M = V(32, 4)
    wa, r1, r2, o0, o1, o1z = V(), V(), V(), V(), V(), V()
    mk = V.mark()
    fj, fg4, th, st, sgn = V(), V(), V(), V(), V()
    cs = V(8); sn = V(8)
    def m2(T2, T, part): return M + ((T2 * 2 + T) * 2 + part) * 4
    A(f'v_cvt_f32_u32 {v(fj)}, {v(j)}')
    A(f'v_lshlrev_b32 {v(t2)}, 2, {v(g)}')
    A(f'v_cvt_f32_u32 {v(fg4)}, {v(t2)}')
    def angles(scale, list_u, base_g, dc, ds):
        A(f'v_mul_f32 {v(st)}, {fh(scale)}, {v(fj)}')
        if base_g: A(f'v_mul_f32 {v(th)}, {v(st)}, {v(fg4)}')
        for n, u in enumerate(list_u):
            if base_g:
                if u: A(f'v_fmamk_f32 {v(ds+n)}, {v(st)}, {fh(float(u))}, {v(th)}'); an = ds + n
                else: an = th
            else: A(f'v_mul_f32 {v(ds+n)}, {fh(float(u))}, {v(st)}'); an = ds + n
            A(f'v_cos_f32 {v(dc+n)}, {v(an)}\nv_sin_f32 {v(ds+n)}, {v(an)}')
    angles(1 / 20, [0, 1, 2, 3], True, cs, sn)
    angles(1 / 20, [16, 17, 18, 19], False, cs + 4, sn + 4)
    A(f'v_cmp_eq_u32 vcc, 0, {v(g)}')
    for i in range(4):
        A(f'v_cvt_pk_bf16_f32 {v(C1+i)}, {v(cs+2*i)}, {v(cs+2*i+1)}')
        A(f'v_cvt_pk_bf16_f32 {v(S1+i)}, -{v(sn+2*i)}, -{v(sn+2*i+1)}')
    for i in (2, 3):
        A(f'v_cndmask_b32 {v(C1+i)}, 0, {v(C1+i)}, vcc\nv_cndmask_b32 {v(S1+i)}, 0, {v(S1+i)}, vcc')
    angles(1 / 640, [0, 1, 2, 3, 16, 17, 18, 19], True, TC, TS)
    angles(1 / 32, [0, 1, 2, 3], True, cs, sn)
    A(f'v_lshlrev_b32 {v(sgn)}, 31, {v(j)}')
    for c in range(4): A(f'v_xor_b32 {v(cs+4+c)}, {v(sgn)}, {v(cs+c)}\nv_xor_b32 {v(sn+4+c)}, {v(sgn)}, {v(sn+c)}')
    for T2 in range(2):
        for T in range(2):
            for c in range(4):
                ng = (T2 == 1 and (c & 1)); P_ = '-' if ng else ''; N_ = '' if ng else '-'
                A(f'v_cvt_pk_bf16_f32 {v(m2(T2,T,0)+c)}, {P_}{v(cs+4*T+c)}, {P_}{v(sn+4*T+c)}')
                A(f'v_cvt_pk_bf16_f32 {v(m2(T2,T,1)+c)}, {N_}{v(sn+4*T+c)}, {P_}{v(cs+4*T+c)}')
    A('s_mul_i32 s37, s3, 10240')
    A(f'v_mul_u32_u24 {v(wa)}, 1280, {v(g)}')
    A(f'v_lshl_add_u32 {v(o0)}, {v(j)}, 4, {v(wa)}')
    A(f'v_add_u32 {v(wa)}, s37, {v(o0)}')
    A(f'v_bfe_u32 {v(t0)}, v0, 2, 2')
    A(f'v_and_b32 {v(t1)}, 3, v0')
    A(f'v_lshlrev_b32 {v(t1)}, 3, {v(t1)}')
    A(f'v_lshl_add_u32 {v(t1)}, {v(t0)}, 6, {v(t1)}')
    A(f'v_add_u32 {v(t1)}, s37, {v(t1)}')
    A(f'v_lshl_add_u32 {v(r1)}, {v(g)}, 8, {v(t1)}')
    A(f'v_add_u32 {v(r2)}, 1024, {v(t1)}')
    A(f'v_sub_u32 {v(o1)}, 4160, {v(o0)}')
    A(f'v_mov_b32 {v(t2)}, 0x40000000')
    A(f'v_cmp_gt_u32 vcc, 11, {v(j)}')
    A(f'v_cndmask_b32 {v(o0)}, {v(t2)}, {v(o0)}, vcc')
    A(f'v_subrev_u32 {v(t0)}, 1, {v(j)}')
    A(f'v_cmp_eq_u32 s[38:39], 0, {v(lane)}')
    A(f'v_cmp_gt_u32 vcc, 9, {v(t0)}')
    A(f'v_cndmask_b32 {v(o1z)}, {v(t2)}, {v(o1)}, s[38:39]')
    A(f'v_cndmask_b32 {v(o1z)}, {v(o1z)}, {v(o1)}, vcc')
    A(f'v_cndmask_b32 {v(o1)}, {v(t2)}, {v(o1)}, vcc')
    V.reset(mk)
    U = V(80, 4); sm = V(4, 2); mb = V(4, 2); rs = V(4, 2); dl = V(2)
    A.stamp(1)
    for b in range(2):
        A(f's_waitcnt vmcnt({24+5*(1-b)})')
        if b == 0: A.stamp(2)
        u = U + 40 * b; acc = sm + 2 * b
        for i in range(20): unpack(A, u + 2 * i, u + 2 * i + 1, XP + 20 * b + i)
        A(f'v_pk_add_f32 {v(acc,2)}, {v(u,2)}, {v(u+2,2)}')
        A(f'v_pk_add_f32 {v(rs,2)}, {v(u+4,2)}, {v(u+6,2)}')
        for i in range(4, 20, 2):
            A(f'v_pk_add_f32 {v(acc,2)}, {v(acc,2)}, {v(u+2*i,2)}')
            A(f'v_pk_add_f32 {v(rs,2)}, {v(rs,2)}, {v(u+2*i+2,2)}')
        A(f'v_pk_add_f32 {v(acc,2)}, {v(acc,2)}, {v(rs,2)}')
        A(f'v_add_f32 {v(acc)}, {v(acc)}, {v(acc+1)}')
    for n in (8, 4, 2, 1):
        for b in range(2): A(f'v_add_f32_dpp {v(sm+2*b)}, {v(sm+2*b)}, {v(sm+2*b)} row_ror:{n} row_mask:0xf bank_mask:0xf')
    for b in range(2):
        A(f'v_mul_f32 {v(sm+2*b)}, {fh(1/640)}, {v(sm+2*b)}')
        rnd_bf16(A, mb + 2 * b, sm + 2 * b)
        A(f'v_sub_f32 {v(dl+b)}, {v(sm+2*b)}, {v(mb+2*b)}')
    for b in range(2):
        u = U + 40 * b; acc = sm + 2 * b; ac2 = rs + 2 * b
        for i in range(20):
            A(f'v_pk_add_f32 {v(u+2*i,2)}, {v(u+2*i,2)}, {v(mb+2*b,2)} {BC} neg_lo:[0,1] neg_hi:[0,1]')
        A(f'v_pk_mul_f32 {v(acc,2)}, {v(u,2)}, {v(u,2)}')
        A(f'v_pk_mul_f32 {v(ac2,2)}, {v(u+2,2)}, {v(u+2,2)}')
        for i in range(2, 20, 2):
            A(f'v_pk_fma_f32 {v(acc,2)}, {v(u+2*i,2)}, {v(u+2*i,2)}, {v(acc,2)}')
            A(f'v_pk_fma_f32 {v(ac2,2)}, {v(u+2*i+2,2)}, {v(u+2*i+2,2)}, {v(ac2,2)}')
        A(f'v_pk_add_f32 {v(acc,2)}, {v(acc,2)}, {v(ac2,2)}')
        A(f'v_add_f32 {v(acc)}, {v(acc)}, {v(acc+1)}')
    for n in (8, 4, 2, 1):
        for b in range(2): A(f'v_add_f32_dpp {v(sm+2*b)}, {v(sm+2*b)}, {v(sm+2*b)} row_ror:{n} row_mask:0xf bank_mask:0xf')
    for b in range(2):
        A(f'v_mul_f32 {v(sm+2*b)}, {fh(1/640)}, {v(sm+2*b)}')
        A(f'v_fma_f32 {v(sm+2*b)}, -{v(dl+b)}, {v(dl+b)}, {v(sm+2*b)}')
        rstd(A, rs + 2 * b, sm + 2 * b)
    for i in range(20):
        a_, b_ = U + 2 * i, U + 40 + 2 * i
        t = sm + 2 * (i & 1)
        A(f'v_pk_mul_f32 {v(t,2)}, {v(a_,2)}, {v(rs,2)} {BC}')
        A(f'v_pk_fma_f32 {v(a_,2)}, {v(b_,2)}, {v(rs+2,2)}, {v(t,2)} op_sel_hi:[1,0,1]')
        A(f'v_pk_fma_f32 {v(b_,2)}, {v(b_,2)}, {v(rs+2,2)}, {v(t,2)} op_sel_hi:[1,0,1] neg_lo:[1,0,0] neg_hi:[1,0,0]')
        A(f'v_cvt_pk_bf16_f32 {v(XP+i)}, {v(a_)}, {v(a_+1)}')
        A(f'v_cvt_pk_bf16_f32 {v(XP+20+i)}, {v(b_)}, {v(b_+1)}')
        if i % 4 == 3:
            for b in range(2): A(f'ds_write_b128 {v(wa)}, {v(XP+20*b+i-3,4)} offset:{5120*b+256*(i//4)}')
    V.reset(mk)
    DA = V(32, 4); D1 = XP; tp = V(4, 2); PO = V(32, 4); lo16 = V(); lr = V()
    OB = 81920
    A(f's_mul_i32 s44, s32, {2*L.GP}')
    A(f's_mul_i32 s46, s3, 6144\ns_add_u32 s46, s46, {OB}')
    A(f'v_lshlrev_b32 {v(lo16)}, 4, {v(lane)}')
    A(f'v_add_u32 {v(lr)}, s46, {v(lo16)}')
    A(f'v_mov_b32 {v(t0)}, 5152')
    for o in (o0, o1, o1z):
        A(f'v_min_u32 {v(o)}, {v(o)}, {v(t0)}\nv_add_u32 {v(o)}, s46, {v(o)}')
    A('s_mov_b32 s45, 0')
    A('s_waitcnt lgkmcnt(0)')
    A.stamp(3)
    A.label('k1_fft_loop')
    def d1(row, T, part): return D1 + (((row & 1) * 2 + T) * 2 + part) * 4
    for row in range(4):
        for T in range(2):
            A(f'ds_read_b64_tr_b16 {v(DA+(row*2+T)*4,2)}, {v(r1)} offset:{row*1280+T*32}')
            A(f'ds_read_b64_tr_b16 {v(DA+(row*2+T)*4+2,2)}, {v(r2)} offset:{row*1280+T*32}')
    A(f'v_add_u32 {v(r1)}, 5120, {v(r1)}\nv_add_u32 {v(r2)}, 5120, {v(r2)}')
    def s1(row):
        A(f's_waitcnt lgkmcnt({12-4*row})')
        for T in range(2):
            A(f'v_mfma_f32_16x16x32_bf16 {v(d1(row,T,0),4)}, {v(DA+(row*2+T)*4,4)}, {v(C1,4)}, 0')
            A(f'v_mfma_f32_16x16x32_bf16 {v(d1(row,T,1),4)}, {v(DA+(row*2+T)*4,4)}, {v(S1,4)}, 0')
    def tw(row):
        for T in range(2):
            for k in (0, 2):
                pk_cmul_conj(A, d1(row,T,0) + k, d1(row,T,1) + k, TC + 4 * T + k, TS + 4 * T + k, tp + k)
            for k in range(4): A(f'v_cvt_pk_bf16_f32 {v(DA+(row*2+T)*4+k)}, {v(d1(row,T,0)+k)}, {v(d1(row,T,1)+k)}')
    def s2(row):
        for T in range(2):
            for T2 in range(2):
                for part in range(2):
                    d = d1(row, T2, part)
                    A(f'v_mfma_f32_16x16x32_bf16 {v(d,4)}, {v(m2(T2,T,part),4)}, {v(DA+(row*2+T)*4,4)}, {v(d,4) if T else 0}')
    def po(row):
        for T2 in range(2):
            for r in range(4):
                A(f'v_cvt_pk_bf16_f32 {v(PO+(T2*4+r)*4+row)}, {v(d1(row,T2,0)+r)}, {"-" if T2 else ""}{v(d1(row,T2,1)+r)}')
    s1(0); s1(1); tw(0); s2(0); tw(1); s2(1); po(0); s1(2); po(1); s1(3); tw(2); s2(2); tw(3); s2(3); po(2); po(3)
    for r in range(4): A(f'ds_write_b128 {v(o0)}, {v(PO+r*4,4)} offset:{r*320}')
    for r in range(4): A(f'ds_write_b128 {v(o1 if r else o1z)}, {v(PO+(4+r)*4,4)} offset:{(3-r)*320}')
    A('s_waitcnt lgkmcnt(0)')
    for i in range(6): A(f'ds_read_b128 {v(PO+4*i,4)}, {v(lr)} offset:{1024*i}')
    A('s_add_u32 s47, s44, 4096')
    for i in range(6):
        A(f's_waitcnt lgkmcnt({5-i})')
        if i == 5: A('s_mov_b64 exec, 15')
        A(f'buffer_store_dwordx4 {v(PO+4*i,4)}, {v(lo16)}, s[24:27], s{44 if i < 4 else 47} offen offset:{1024*(i%4)} sc1')
    A('s_mov_b64 exec, -1')
    A(f's_add_u32 s44, s44, {L.GP}\ns_add_u32 s45, s45, 1\ns_cmp_lt_u32 s45, 2\ns_cbranch_scc1 k1_fft_loop')
    A.stamp(4)
    A(f's_sub_u32 s44, s44, {2*L.GP}')
    A('s_mov_b32 s48, 0x05040100\ns_mov_b32 s49, 0x07060302')
    wa0 = V(); wa1 = V(4); wa2 = V()
    A(f'v_lshlrev_b32 {v(t0)}, 6, {v(lane)}')
    A(f'v_add_u32 {v(wa0)}, s37, {v(t0)}')
    A(f's_add_u32 s50, s37, 4096\ns_sub_u32 s51, s46, {321*16-4096}')
    for i in range(4):
        A(f'v_cmp_lt_u32 vcc, {16 if i == 0 else 15}, {v(lane)}')
        A(f'v_mov_b32 {v(t1)}, s50\nv_mov_b32 {v(t2)}, s51')
        A(f'v_cndmask_b32 {v(wa1+i)}, {v(t1)}, {v(t2)}, vcc')
        A(f'v_add_u32 {v(wa1+i)}, {v(wa1+i)}, {v(t0)}')
    A(f'v_min_u32 {v(t0)}, {33*64}, {v(t0)}')
    A(f's_add_u32 s51, s46, {(512-321)*16}')
    A(f'v_add_u32 {v(wa2)}, s51, {v(t0)}')
    A('s_waitcnt vmcnt(12)')
    for cc in range(3):
        for i in range(4):
            d = PO + (i & 1) * 4 + (cc & 1) * 8 + (i >> 1) * 16
            for r in range(4):
                A(f'v_perm_b32 {v(d+r)}, {v(wl(cc,1,r)+(i>>1))}, {v(wl(cc,0,r)+(i>>1))}, s{48+(i&1)}')
            A(f'ds_write_b128 {v([wa0, wa1+i, wa2][cc])}, {v(d,4)} offset:{16*i}')
    A(f'v_add_u32 {v(t0)}, s37, {v(lo16)}')
    A('s_waitcnt lgkmcnt(0)')
    A.stamp(5)
    for hf in range(2):
        for i in range(6): A(f'ds_read_b128 {v(WL+24*hf+4*i,4)}, {v(lr if hf else t0)} offset:{1024*i}')
    for hf in range(2):
        A('s_add_u32 s47, s44, 4096')
        for i in range(6):
            A(f's_waitcnt lgkmcnt({11-6*hf-i})')
            if i == 5: A('s_mov_b64 exec, 15')
            A(f'buffer_store_dwordx4 {v(WL+24*hf+4*i,4)}, {v(lo16)}, s[28:31], s{44 if i < 4 else 47} offen offset:{1024*(i%4)} sc1')
        A('s_mov_b64 exec, -1')
        A(f's_add_u32 s44, s44, {L.GP}')
    A.stamp(6)
    A.end(0, 7)
    return V.hi

NST = 10; RING = 4
def gen_gemm(A):
    V = VA()
    A('s_and_b32 s10, s4, 3\ns_lshl_b32 s10, s10, 2\ns_and_b32 s11, s5, 3\ns_add_u32 s10, s10, s11')
    A('s_lshr_b32 s11, s4, 2\ns_mul_i32 s11, s11, 7\ns_lshr_b32 s28, s5, 2\ns_add_u32 s11, s11, s28')
    srd(A, 12, 8, 0, XB); srd(A, 16, 44, 0, 640 * 3456)
    lane, t0, t1, t2 = V(), V(), V(), V()
    A(f'v_and_b32 {v(lane)}, 63, v0')
    A('s_lshl_b32 s31, s11, 8')
    xo = V(2); wo = V()
    A(f'v_lshrrev_b32 {v(t0)}, 3, {v(lane)}')
    A(f'v_lshrrev_b32 {v(t1)}, 4, {v(lane)}')
    A(f'v_and_b32 {v(t2)}, 7, v0')
    A(f'v_xor_b32 {v(t2)}, {v(t2)}, {v(t1)}')
    A(f'v_mul_u32_u24 {v(xo)}, 1280, {v(t0)}')
    A(f'v_lshl_add_u32 {v(xo)}, {v(t2)}, 4, {v(xo)}')
    A(f'v_xor_b32 {v(xo+1)}, 64, {v(xo)}')
    A(f'v_add_u32 {v(xo+1)}, {8*1280}, {v(xo+1)}')
    A(f'v_lshlrev_b32 {v(t0)}, 2, {v(t1)}')
    A(f'v_and_b32 {v(t2)}, 15, v0')
    A(f'v_xor_b32 {v(t2)}, {v(t2)}, {v(t0)}')
    A(f'v_mul_u32_u24 {v(wo)}, 3456, {v(t1)}')
    A(f'v_lshl_add_u32 {v(wo)}, {v(t2)}, 4, {v(wo)}')
    ROT = os.environ.get('ROT', '4')
    if ROT == '4': A('s_add_u32 s32, s10, s11\ns_and_b32 s32, s32, 3\ns_mul_i32 s32, s32, 5\ns_lshr_b32 s32, s32, 1')
    if ROT == '2': A('s_add_u32 s32, s10, s11\ns_and_b32 s32, s32, 1\ns_mul_i32 s32, s32, 5')
    if ROT == '2b': A('s_add_u32 s32, s10, s11\ns_and_b32 s32, s32, 1\ns_mul_i32 s32, s32, 2')
    if ROT == '4b': A('s_add_u32 s32, s10, s11\ns_and_b32 s32, s32, 3')
    if ROT == '0': A('s_mov_b32 s32, 0')
    if ROT == 'x': A('s_mov_b32 s32, s4')
    A('s_lshl_b32 s33, s10, 3\ns_add_u32 s33, s33, s3\ns_mul_i32 s33, s33, 20480')
    A(f's_mul_i32 s34, s3, {8*3456}\ns_add_u32 s34, s34, s31')
    A('s_lshl_b32 s35, s3, 11')
    def piece(st, n):
        slot = st % RING
        if n == 0:
            A(f's_lshl_b32 s36, s32, 7\ns_add_u32 m0, s35, {slot*16384}\ns_add_u32 s36, s36, s33')
            A(f'buffer_load_dwordx4 {v(xo)}, s[12:15], s36 offen lds')
        if n == 1:
            A(f's_mul_i32 s37, s32, {64*3456}\ns_add_u32 m0, s35, {65536+slot*16384}\ns_add_u32 s37, s37, s34')
            A(f'buffer_load_dwordx4 {v(wo)}, s[16:19], s37 offen lds')
        if n == 2:
            A(f's_add_u32 m0, s35, {slot*16384+1024}')
            A('s_add_u32 s32, s32, 1')
            A(f'buffer_load_dwordx4 {v(xo+1)}, s[12:15], s36 offen lds')
        if n == 3:
            A(f's_add_u32 m0, s35, {65536+slot*16384+1024}\ns_add_u32 s37, s37, {4*3456}')
            A(f'buffer_load_dwordx4 {v(wo)}, s[16:19], s37 offen lds')
            A('s_cmp_eq_u32 s32, 10\ns_cselect_b32 s32, 0, s32')
    def issue(st):
        for n in range(4): piece(st, n)
    issue(0)
    A('s_barrier')
    issue(1)
    srd(A, 20, 46, 0, 3456); srd(A, 24, 6, L.OFF_H, L.SZ_H)
    A('s_and_b32 s29, s3, 3\ns_lshr_b32 s30, s3, 2')
    b1r = V(2, 2)
    A(f'v_lshlrev_b32 {v(t0)}, 2, {v(lane)}')
    A(f'buffer_load_dword {v(b1r)}, {v(t0)}, s[20:23], s31 offen')
    srd(A, 52, 48, 0, 1728 * 1280)
    A('s_lshl_b32 s50, s2, 3\ns_add_u32 s50, s50, s3\ns_mul_i32 s50, s50, 1280')
    xa = V(4); wa = V(8); j, h = V(), V()
    A(f'v_and_b32 {v(j)}, 31, v0')
    A(f'v_bfe_u32 {v(h)}, v0, 5, 1')
    A('s_lshr_b32 s39, s29, 1\ns_xor_b32 s39, s39, s30')
    A('s_and_b32 s43, s29, 1')
    A(f'v_bfe_u32 {v(t0)}, v0, 1, 3')
    A(f'v_xor_b32 {v(t0)}, {v(t0)}, {v(h)}')
    A(f'v_lshlrev_b32 {v(t0)}, 4, {v(t0)}')
    A(f'v_lshl_add_u32 {v(t0)}, {v(j)}, 7, {v(t0)}')
    A('s_lshl_b32 s40, s29, 12')
    A(f'v_add_u32 {v(t0)}, s40, {v(t0)}')
    for p in range(4):
        A(f's_xor_b32 s40, s39, {p}\ns_lshl_b32 s40, s40, 5')
        A(f'v_xor_b32 {v(xa+p)}, s40, {v(t0)}')
    A(f'v_bfe_u32 {v(t0)}, v0, 2, 2')
    A(f'v_lshl_add_u32 {v(t1)}, {v(h)}, 3, {v(t0)}')
    A(f'v_lshlrev_b32 {v(t1)}, 8, {v(t1)}')
    A(f'v_bfe_u32 {v(t2)}, v0, 4, 1')
    A(f'v_lshl_add_u32 {v(t1)}, {v(t2)}, 5, {v(t1)}')
    A(f'v_and_b32 {v(t2)}, 3, v0')
    A(f'v_lshl_add_u32 {v(t1)}, {v(t2)}, 3, {v(t1)}')
    A(f'v_lshl_add_u32 {v(t1)}, {v(t0)}, 6, {v(t1)}')
    A('s_lshl_b32 s41, s30, 1\ns_or_b32 s41, s41, s43\ns_lshl_b32 s41, s41, 6')
    for p in range(4):
        for t in range(2):
            A(f's_xor_b32 s40, s39, {p}\ns_lshl_b32 s40, s40, 12\ns_or_b32 s40, s40, s41\ns_xor_b32 s40, s40, {65536+64*t}')
            A(f'v_xor_b32 {v(wa+2*p+t)}, s40, {v(t1)}')
    SEL = V(4, 4)
    A(f'v_lshrrev_b32 {v(t0)}, 2, v0')
    A(f'v_xor_b32 {v(t0)}, {v(t0)}, v0')
    A(f'v_and_b32 {v(t0)}, 4, {v(t0)}')
    A(f'v_cmp_eq_u32 vcc, 0, {v(t0)}')
    A(f'v_mov_b32 {v(t0)}, 0x3f803f80')
    for i in range(4): A(f'v_cndmask_b32 {v(SEL+i)}, 0, {v(t0)}, vcc')
    A(f'v_and_b32 {v(t0)}, 11, v0\nv_cmp_eq_u32 s[98:99], 0, {v(t0)}')
    A(f'v_lshlrev_b32 {v(t0)}, 3, {v(lane)}')
    A(f'v_add_u32 {v(t0)}, {STAT}, {v(t0)}')
    ACC = V(32, 4); GR = V(8, 4); RS = V(4, 4); CS = V(4, 4); PFD = V(8, 4); pfo = V(2)
    A(f'v_lshlrev_b32 {v(pfo)}, 4, {v(lane)}\nv_lshlrev_b32 {v(pfo+1)}, 2, {v(lane)}')
    mk = V.mark()
    NB = 4
    XF = V(4 * NB, 4); WF = V(8 * NB, 4)
    def rd(k):
        st, p = divmod(k, 4); off = (st % RING) * 16384; b = k % NB
        out = [f'ds_read_b128 {v(XF+4*b,4)}, {v(xa+p)} offset:{off}']
        for t in range(2):
            for e in range(2):
                out.append(f'ds_read_b64_tr_b16 {v(WF+8*b+4*t+2*e,2)}, {v(wa+2*p+t)} offset:{off+1024*e}')
        return out
    UP = V(8, 2)
    A('s_mov_b32 s42, 0xffff0000\ns_mov_b32 s51, 0x3f803f80')
    for r in range(4): A(f'v_mov_b32 {v(RS+r)}, 0\nv_mov_b32 {v(GR+r)}, 0\nv_mov_b32 {v(CS+r)}, 0')
    NK = 4 * NST
    npieces = 8
    A.stamp(1)
    A(f's_waitcnt vmcnt(5)\ns_barrier')
    A.stamp(2)
    for x in rd(0) + rd(1): A(x)
    for k in range(NK):
        st, p = divmod(k, 4); b = k % NB
        if k in (13, 25): A.stamp(3 if k == 13 else 4)
        nxt = rd(k + 2) if k + 2 < NK else []
        bar = (k + 2 < NK and p == 2)
        if bar: A(f's_waitcnt vmcnt({npieces-4*(st+2)}) lgkmcnt(0)\ns_barrier')
        else: A(f's_waitcnt lgkmcnt({5 if k + 1 < NK else 0})')
        xf = v(XF+4*b,4)
        if k == 2:
            A(f'v_and_b32 {v(b1r+1)}, 0xffff0000, {v(b1r)}\nv_lshlrev_b32 {v(b1r)}, 16, {v(b1r)}')
            A(f'ds_write_b64 {v(t0)}, {v(b1r,2)} offset:3072')
        va = []
        if STATS in 'XY' and p in (0, 2):
            for i in range(4):
                u = UP + 2 * i
                va += [f'v_lshlrev_b32 {v(u)}, 16, {v(XF+4*b+i)}', f'v_and_b32 {v(u+1)}, s42, {v(XF+4*b+i)}',
                       f'v_pk_add_f32 {v(RS+2*(i&1),2)}, {v(RS+2*(i&1),2)}, {v(u,2)}', f'v_pk_fma_f32 {v(GR+2*(i&1),2)}, {v(u,2)}, {v(u,2)}, {v(GR+2*(i&1),2)}']
        if STATS in 'AB' and p in (0, 2):
            for i in range(4):
                u = UP + 2 * i
                va += [f'v_lshlrev_b32 {v(u)}, 16, {v(XF+4*b+i)}', f'v_and_b32 {v(u+1)}, s42, {v(XF+4*b+i)}']
            pend = []
            for i in range(8):
                pend += [f'v_fmac_f32 {v(GR+(i&3))}, {v(UP+i)}, {v(UP+i)}']
                if STATS == 'B': pend += [f'v_add_f32 {v(RS+(i&3))}, {v(RS+(i&3))}, {v(UP+i)}']
            n0 = 4 if STATS == 'B' else 0
            va += pend[:n0]; carry = pend[n0:]
        if STATS in 'AB' and p in (1, 3): va += carry
        if STATS == 'X' and p in (1, 3):
            for i in range(4):
                u = UP + 2 * i
                va += [f'v_lshlrev_b32 {v(u)}, 16, {v(WF+8*b+i)}', f'v_and_b32 {v(u+1)}, s42, {v(WF+8*b+i)}',
                       f'v_pk_add_f32 {v(CS+2*(i&1),2)}, {v(CS+2*(i&1),2)}, {v(u,2)}']
        if STATS == 'Z':
            for i in range(4):
                if p in (0, 2): va += [f'v_dot2c_f32_bf16 {v(RS+(i&1))}, s51, {v(XF+4*b+i)}', f'v_dot2c_f32_bf16 {v(GR+(i&1))}, {v(XF+4*b+i)}, {v(XF+4*b+i)}']
                else: va += [f'v_dot2c_f32_bf16 {v(CS+(i&1))}, s51, {v(WF+8*b+i)}']
        hv = len(va) // 2
        A(f'v_mfma_f32_32x32x16_bf16 {v(ACC,16)}, {v(WF+8*b,4)}, {xf}, {v(ACC,16) if k else 0}')
        for x in nxt[:3]: A(x)
        for x in va[:hv]: A(x)
        A(f'v_mfma_f32_32x32x16_bf16 {v(ACC+16,16)}, {v(WF+8*b+4,4)}, {xf}, {v(ACC+16,16) if k else 0}')
        for x in nxt[3:]: A(x)
        for x in va[hv:]: A(x)
        if p in (0, 2) and STATS == 'M':
            for e in range(2):
                A(f'v_mfma_f32_4x4x4_16b_bf16 {v(GR+4*e,4)}, {v(XF+4*b+2*e,2)}, {v(XF+4*b+2*e,2)}, {v(GR+4*e,4) if k else 0}')
            A(f'v_mfma_f32_16x16x32_bf16 {v(RS,4)}, {v(SEL,4)}, {xf}, {v(RS,4) if k else 0}')
        if p in (0, 2) and STATS == 'A':
            A(f'v_mfma_f32_16x16x32_bf16 {v(RS,4)}, {v(SEL,4)}, {xf}, {v(RS,4) if k else 0}')
        if p in (1, 3) and STATS in 'MYABC':
            A(f'v_mfma_f32_16x16x32_bf16 {v(CS,4)}, {v(WF+8*b,4)}, {v(SEL,4)}, {v(CS,4) if k > 1 else 0}')
        for _ in range(SCHED(k)):
            sn = npieces // 4
            if sn < NST and (sn < RING or k >= 4 * (sn - RING) + 2): piece(sn, npieces % 4); npieces += 1
        if bar and st == NST - 2 and PREFETCH_W2:
            A(f'buffer_load_dwordx4 {v(PFD,4)}, {v(pfo)}, s[52:55], s50 offen')
            A(f'buffer_load_dword {v(PFD+4)}, {v(pfo+1)}, s[52:55], s50 offen offset:1024')
    A.stamp(5)
    V.reset(mk)
    A(f's_lshl_b32 s40, s29, 7\ns_add_u32 s40, s40, {STAT}')
    A(f'v_lshl_add_u32 {v(t0)}, {v(j)}, 2, s40')
    A('s_lshl_b32 s41, s30, 9')
    A(f'v_add_u32 {v(t2)}, s41, {v(t0)}')
    assert STATS == 'B' or os.environ.get('STATS')
    for R_ in (GR, RS):
        A(f'v_pk_add_f32 {v(R_,2)}, {v(R_,2)}, {v(R_+2,2)}')
        A(f'v_add_f32 {v(R_)}, {v(R_)}, {v(R_+1)}')
        A(f'v_mov_b32 {v(R_+1)}, {v(R_)}')
    for R_ in (GR, RS): A(f'v_permlane32_swap_b32 {v(R_)}, {v(R_+1)}')
    for R_ in (GR, RS): A(f'v_add_f32 {v(R_)}, {v(R_)}, {v(R_+1)}')
    A(f's_lshr_b32 s40, s29, 1\ns_lshl_b32 s40, s40, 9\ns_lshl_b32 s41, s30, 8\ns_add_u32 s40, s40, s41\ns_lshl_b32 s41, s43, 7\ns_add_u32 s40, s40, s41\ns_add_u32 s40, s40, {STAT+2048}')
    A(f'v_and_b32 {v(t1)}, 48, v0')
    A(f'v_bfe_u32 {v(b1r)}, v0, 2, 1')
    A(f'v_lshl_add_u32 {v(t1)}, {v(b1r)}, 6, {v(t1)}')
    A(f'v_add_u32 {v(t1)}, s40, {v(t1)}')
    A(f'ds_write_b32 {v(t2)}, {v(RS)}\nds_write_b32 {v(t2)}, {v(GR)} offset:1024')
    A('s_mov_b64 exec, s[98:99]')
    A(f'ds_write_b128 {v(t1)}, {v(CS,4)}')
    A('s_mov_b64 exec, -1')
    ca = V(2)
    A(f's_lshl_b32 s41, s30, 8\ns_lshl_b32 s40, s43, 7\ns_add_u32 s41, s41, s40\ns_add_u32 s41, s41, {STAT+2048}')
    A(f'v_lshl_add_u32 {v(ca)}, {v(h)}, 4, s41')
    A(f'v_xor_b32 {v(ca+1)}, 128, {v(ca)}')
    A('s_waitcnt lgkmcnt(0)\ns_barrier')
    A('s_cmp_eq_u32 s11, 13\ns_cselect_b32 s40, s30, 0\ns_cmp_lg_u32 s40, 0\ns_cbranch_scc1 k1_end')
    A.stamp(6)
    CC = V(32, 4); C2 = V(32, 4); BB = V(32, 4); sa = V(2, 2); qa = V(2, 2)
    A(f'ds_read2st64_b32 {v(sa,2)}, {v(t0)} offset0:0 offset1:2\nds_read2st64_b32 {v(qa,2)}, {v(t0)} offset0:4 offset1:6')
    for i in range(8):
        a_ = v(ca + i // 4); o = 32 * (i % 4)
        A(f'ds_read_b128 {v(CC+4*i,4)}, {a_} offset:{o}')
        A(f'ds_read_b128 {v(C2+4*i,4)}, {a_} offset:{512+o}')
        A(f'ds_read_b128 {v(BB+4*i,4)}, {a_} offset:{1024+o}')
        if i == 3:
            rr = V(2, 2); rm = V(2, 2); k1 = V(2, 2); k2 = V(2, 2); one = V(2, 2); ho = V()
            c1 = -2 * math.sqrt(2 / math.pi) * LOG2E
            A(f'v_mov_b32 {v(k1)}, {fh(c1)}\nv_mov_b32 {v(k2)}, {fh(c1*0.044715)}\nv_mov_b32 {v(one)}, 1.0')
            A(f'v_lshlrev_b32 {v(ho)}, 4, {v(lane)}')
            A('s_lshl_b32 s40, s10, 2\ns_add_u32 s40, s40, s29\ns_mul_i32 s40, s40, 108\ns_lshl_b32 s41, s11, 3\ns_add_u32 s40, s40, s41')
            A('s_lshl_b32 s41, s30, 2\ns_add_u32 s40, s40, s41\ns_lshl_b32 s40, s40, 10')
            A('s_lshl_b32 s41, s43, 11\ns_add_u32 s41, s40, s41\ns_xor_b32 s42, s43, 1\ns_lshl_b32 s42, s42, 11\ns_add_u32 s42, s40, s42')
            A('s_waitcnt lgkmcnt(12)')
            A(f'v_add_f32 {v(sa)}, {v(sa)}, {v(sa+1)}\nv_add_f32 {v(qa)}, {v(qa)}, {v(qa+1)}')
            A(f'v_mul_f32 {v(sa)}, {fh(1/640)}, {v(sa)}\nv_mul_f32 {v(qa)}, {fh(1/640)}, {v(qa)}')
            A(f'v_fma_f32 {v(qa)}, -{v(sa)}, {v(sa)}, {v(qa)}')
            rstd(A, rr, qa)
            rnd_bf16(A, sa, sa)
            A(f'v_mul_f32 {v(rm)}, {v(rr)}, {v(sa)}')
    Q = V(8, 2); HO = V(8, 4)
    for c in range(4):
        A(f's_waitcnt lgkmcnt({[12, 12, 6, 0][c]})')
        u = ACC + 8 * c
        for i in range(4): A(f'v_pk_add_f32 {v(CC+8*c+2*i,2)}, {v(CC+8*c+2*i,2)}, {v(C2+8*c+2*i,2)}')
        for i in range(4): A(f'v_pk_fma_f32 {v(BB+8*c+2*i,2)}, {v(CC+8*c+2*i,2)}, {v(rm,2)}, {v(BB+8*c+2*i,2)} op_sel_hi:[1,0,1] neg_lo:[1,0,0] neg_hi:[1,0,0]')
        for i in range(4): A(f'v_pk_fma_f32 {v(u+2*i,2)}, {v(u+2*i,2)}, {v(rr,2)}, {v(BB+8*c+2*i,2)} op_sel_hi:[1,0,1]')
        for i in range(4): A(f'v_pk_mul_f32 {v(Q+2*i,2)}, {v(u+2*i,2)}, {v(u+2*i,2)}')
        for i in range(4): A(f'v_pk_fma_f32 {v(Q+2*i,2)}, {v(Q+2*i,2)}, {v(k2,2)}, {v(k1,2)} op_sel_hi:[1,0,0]')
        for i in range(4): A(f'v_pk_mul_f32 {v(Q+2*i,2)}, {v(Q+2*i,2)}, {v(u+2*i,2)}')
        for i in range(8): A(f'v_exp_f32 {v(Q+i)}, {v(Q+i)}')
        for i in range(4): A(f'v_pk_add_f32 {v(Q+2*i,2)}, {v(Q+2*i,2)}, {v(one,2)} {BC}')
        for i in range(8): A(f'v_rcp_f32 {v(Q+i)}, {v(Q+i)}')
        for i in range(4): A(f'v_pk_mul_f32 {v(u+2*i,2)}, {v(u+2*i,2)}, {v(Q+2*i,2)}')
        d = HO + 4 * (c & 1)
        for i in range(4): A(f'v_cvt_pk_bf16_f32 {v(d+i)}, {v(u+2*i)}, {v(u+2*i+1)}')
        A(f'buffer_store_dwordx4 {v(d,4)}, {v(ho)}, s[24:27], s{41+c//2} offen offset:{1024*(c&1)} sc1')
    A.stamp(7)
    A.end(0, 8)
    return V.hi

def gen_k1(A):
    header(A, 'k1_kernel')
    A('s_cmp_ge_u32 s2, 256\ns_cbranch_scc1 k1_end')
    A('s_load_dwordx2 s[6:7], s[0:1], 80\ns_load_dwordx2 s[8:9], s[0:1], 0\ns_load_dwordx4 s[40:43], s[0:1], 8\ns_load_dwordx4 s[44:47], s[0:1], 32\ns_load_dwordx2 s[48:49], s[0:1], 48')
    A('v_lshrrev_b32 v1, 6, v0')
    A('v_readfirstlane_b32 s3, v1')
    A('s_and_b32 s4, s2, 7\ns_lshr_b32 s5, s2, 3')
    A('s_waitcnt lgkmcnt(0)')
    A.stamp(0)
    A('s_cmp_lt_u32 s5, 28\ns_cbranch_scc1 k1_gemm')
    A('s_sub_u32 s4, s2, 224')
    n1 = gen_fft(A)
    A.label('k1_gemm')
    n2 = gen_gemm(A)
    A.label('k1_end')
    A('s_endpgm')
    return max(n1, n2)
```

```python
from asmlib import *
import layouts as L
from gen import VA, srd, header, unpack, XB

K2_LDS = 131072
assert all(((i * 3277) >> 16) == i // 20 for i in range(320))

def pk_cmul_conj(A, re, im, c, sn, t):
    A(f'v_pk_mul_f32 {v(t,2)}, {v(re,2)}, {v(sn,2)}')
    A(f'v_pk_mul_f32 {v(re,2)}, {v(re,2)}, {v(c,2)}')
    A(f'v_pk_fma_f32 {v(re,2)}, {v(im,2)}, {v(sn,2)}, {v(re,2)}')
    A(f'v_pk_fma_f32 {v(im,2)}, {v(im,2)}, {v(c,2)}, {v(t,2)} neg_lo:[0,0,1] neg_hi:[0,0,1]')
def pk_cmul(A, re, im, c, sn, t):
    A(f'v_pk_mul_f32 {v(t,2)}, {v(re,2)}, {v(sn,2)}')
    A(f'v_pk_mul_f32 {v(re,2)}, {v(re,2)}, {v(c,2)}')
    A(f'v_pk_fma_f32 {v(re,2)}, {v(im,2)}, {v(sn,2)}, {v(re,2)} neg_lo:[1,0,0] neg_hi:[1,0,0]')
    A(f'v_pk_fma_f32 {v(im,2)}, {v(im,2)}, {v(c,2)}, {v(t,2)}')

def gen_fft(A):
    V = VA()
    A.label('k2_fft')
    A('s_cmp_ge_u32 s4, 54\ns_cbranch_scc1 k2_end')
    srd(A, 12, 6, L.OFF_A, L.SZ_A); srd(A, 16, 6, L.OFF_WT, L.SZ_A); srd(A, 20, 6, L.OFF_P, L.SZ_A)
    A('s_and_b32 s24, s4, 1\ns_lshr_b32 s25, s4, 1')
    lane, t0, t1, t2, vo = V(), V(), V(), V(), V()
    A(f'v_and_b32 {v(lane)}, 63, v0')
    A(f'v_lshrrev_b32 {v(t0)}, 4, {v(lane)}')
    A('s_and_b32 s26, s3, 3\ns_lshl_b32 s26, s26, 2')
    A(f'v_add_u32 {v(t1)}, s26, {v(t0)}')
    A(f'v_and_b32 {v(t2)}, 15, v0')
    A(f'v_xor_b32 {v(t1)}, {v(t1)}, {v(t2)}')
    A(f'v_mul_u32_u24 {v(vo)}, {2*L.GP}, {v(t0)}')
    A(f'v_lshl_add_u32 {v(vo)}, {v(t1)}, 4, {v(vo)}')
    A(f'v_cmp_gt_u32 vcc, 12, {v(t1)}')
    A(f'v_mov_b32 {v(t2)}, 0x40000000')
    A(f'v_cndmask_b32 {v(vo)}, {v(t2)}, {v(vo)}, vcc')
    A(f's_lshl_b32 s27, s3, 3\ns_add_u32 s27, s27, s24\ns_mul_i32 s27, s27, {L.GP}\ns_mul_i32 s28, s25, 192\ns_add_u32 s27, s27, s28')
    A('s_lshl_b32 s29, s3, 10')
    for i in range(8):
        A('s_mov_b32 m0, s29')
        A(f'buffer_load_dwordx4 {v(vo)}, s[12:15], s27 offen lds')
        A('s_add_u32 m0, s29, 65536')
        A(f'buffer_load_dwordx4 {v(vo)}, s[16:19], s27 offen lds')
        if i < 7: A(f's_add_u32 s27, s27, {64*L.GP}\ns_add_u32 s29, s29, 8192')
    j, h = V(), V()
    A(f'v_and_b32 {v(j)}, 31, v0')
    A(f'v_bfe_u32 {v(h)}, v0, 5, 1')
    fj, fh4, sa, pa, sb, pb, pt_ = V(), V(), V(), V(), V(), V(), V()
    A(f'v_cvt_f32_u32 {v(fj)}, {v(j)}')
    A(f'v_lshlrev_b32 {v(t0)}, 2, {v(h)}')
    A(f'v_cvt_f32_u32 {v(fh4)}, {v(t0)}')
    A(f's_cmp_eq_u32 s24, 0\ns_cselect_b32 s30, 0, {fh(1/64)}')
    A(f'v_mul_f32 {v(sb)}, {fh(1/32)}, {v(fj)}')
    A(f'v_add_f32 {v(sa)}, s30, {v(sb)}')
    A(f'v_mul_f32 {v(pa)}, {v(sa)}, {v(fh4)}')
    A(f'v_mul_f32 {v(pb)}, {v(sb)}, {v(fh4)}')
    A(f'v_fma_f32 {v(pt_)}, {v(fj)}, s30, {v(pb)}')
    FA = V(32, 4); FB = V(32, 4); FT = V(32, 4)
    T1C = V(16, 2); T1S = V(16, 2); T2C = V(16, 2); T2S = V(16, 2)
    X = V(16, 4); Wd = V(16, 4); RE = V(16, 4); IM = V(16, 4); tp = V(4, 2); wu = V(4, 2)
    tmp = [RE + i for i in range(16)] + [IM + i for i in range(16)]
    n = 0
    def gen_set(M, step, ph, TC, TS):
        nonlocal n
        for g in range(4):
            for r in range(4):
                u = 8 * g + r; k = 4 * g + r
                an, c_, s_ = tmp[(3 * n) % 30], tmp[(3 * n + 1) % 30], tmp[(3 * n + 2) % 30]; n += 1
                if u: A(f'v_fmamk_f32 {v(an)}, {v(step)}, {fh(float(u))}, {v(ph)}')
                else: an = ph
                A(f'v_cos_f32 {v(c_)}, {v(an)}\nv_sin_f32 {v(s_)}, {v(an)}')
                if TC is not None:
                    A(f'v_mul_f32 {v(TC+k)}, {fh(1/32)}, {v(an)}')
                    A(f'v_sin_f32 {v(TS+k)}, {v(TC+k)}\nv_cos_f32 {v(TC+k)}, {v(TC+k)}')
                A(f'v_cvt_pk_bf16_f32 {v(M+k)}, {v(c_)}, {v(s_)}')
                A(f'v_cvt_pk_bf16_f32 {v(M+16+k)}, -{v(s_)}, {v(c_)}')
    gen_set(FA, sa, pa, T1C, T1S)
    gen_set(FB, sb, pb, None, None)
    gen_set(FT, sb, pt_, T2C, T2S)
    rb0, ra, rw, so = V(), V(), V(), V()
    A(f'v_lshlrev_b32 {v(rb0)}, 8, {v(lane)}')
    A(f'v_and_b32 {v(t2)}, 15, v0')
    A(f'v_lshlrev_b32 {v(so)}, 11, {v(j)}')
    A(f'v_lshl_add_u32 {v(so)}, {v(h)}, 8, {v(so)}')
    A(f'v_and_b32 {v(t0)}, 1, v0')
    A(f'v_lshl_add_u32 {v(t0)}, {v(t0)}, 3, {v(h)}')
    A(f'v_lshl_add_u32 {v(so)}, {v(t0)}, 4, {v(so)}')
    A('s_mov_b32 s31, s3')
    A.stamp(1)
    A('s_waitcnt vmcnt(0)')
    A.stamp(2)
    A('s_barrier')
    A.stamp(3)
    A.label('k2_task')
    A('s_mul_i32 s32, s25, 12\ns_add_u32 s32, s32, s31')
    A('s_cmp_gt_u32 s32, 320\ns_cbranch_scc1 k2_fend')
    A(f'v_xor_b32 {v(t0)}, s31, {v(t2)}')
    A(f'v_lshl_add_u32 {v(ra)}, {v(t0)}, 4, {v(rb0)}')
    A(f'v_add_u32 {v(rw)}, 0x10000, {v(ra)}')
    for q in range(4): A(f'ds_read_b128 {v(X+4*q,4)}, {v(ra)} offset:{q*16384}')
    for q in range(4): A(f'ds_read_b128 {v(Wd+4*q,4)}, {v(rw)} offset:{q*16384}')
    for g in range(4): A(f's_xor_b32 s{33+g}, s31, {2*g}\ns_lshl_b32 s{33+g}, s{33+g}, 4')
    def stage(M, data_is_A, waits=False):
        for q in range(4):
            if waits: A(f's_waitcnt lgkmcnt({7-q})')
            for D, off in ((RE, 0), (IM, 16)):
                a_, b_ = (v(X+4*q,4), v(M+off+4*q,4)) if data_is_A else (v(M+off+4*q,4), v(X+4*q,4))
                A(f'v_mfma_f32_32x32x16_bf16 {v(D,16)}, {a_}, {b_}, {v(D,16) if q else 0}')
    def pack(neg):
        for k in range(16): A(f'v_cvt_pk_bf16_f32 {v(X+k)}, {v(RE+k)}, {"-" if neg else ""}{v(IM+k)}')
    def tw(TC, TS):
        for k in range(0, 16, 2):
            pk_cmul_conj(A, RE + k, IM + k, TC + k, TS + k, tp + (k & 2))
            for kk in (k, k + 1): A(f'v_cvt_pk_bf16_f32 {v(X+kk)}, {v(RE+kk)}, {v(IM+kk)}')
    stage(FA, True, True)
    tw(T1C, T1S)
    stage(FB, False)
    A('s_waitcnt lgkmcnt(0)')
    for k in range(0, 16, 2):
        A(f'v_lshlrev_b32 {v(wu)}, 16, {v(Wd+k)}\nv_lshlrev_b32 {v(wu+1)}, 16, {v(Wd+k+1)}')
        A(f'v_and_b32 {v(Wd+k)}, 0xffff0000, {v(Wd+k)}\nv_and_b32 {v(Wd+k+1)}, 0xffff0000, {v(Wd+k+1)}')
        pk_cmul(A, RE + k, IM + k, wu, Wd + k, tp + (k & 2))
        for kk in (k, k + 1): A(f'v_cvt_pk_bf16_f32 {v(X+kk)}, {v(RE+kk)}, -{v(IM+kk)}')
    stage(FB, True)
    tw(T2C, T2S)
    stage(FT, True)
    for g in range(4):
        for r in range(4): A(f'v_cvt_pk_bf16_f32 {v(Wd+4*g+r)}, {v(RE+4*g+r)}, -{v(IM+4*g+r)}')
        A(f'v_xor_b32 {v(tp+g)}, s{33+g}, {v(so)}')
        A(f'ds_write_b128 {v(tp+g)}, {v(Wd+4*g,4)} offset:{512*g}')
    A('s_add_u32 s31, s31, 8\ns_cmp_lt_u32 s31, 12')
    A.stamp(4)
    A('s_cbranch_scc1 k2_task')
    A.label('k2_fend')
    A(f'v_lshlrev_b32 {v(ra)}, 4, {v(lane)}')
    A('s_lshl_b32 s29, s3, 10')
    A(f'v_add_u32 {v(ra)}, s29, {v(ra)}')
    A(f's_sub_u32 s27, s27, {7*64*L.GP}')
    A('s_waitcnt lgkmcnt(0)\ns_barrier')
    for i in range(8): A(f'ds_read_b128 {v(RE+4*i,4)}, {v(ra)} offset:{8192*i}')
    for i in range(8):
        A(f's_waitcnt lgkmcnt({7-i})')
        A(f'buffer_store_dwordx4 {v(RE+4*i,4)}, {v(vo)}, s[20:23], s27 offen sc1')
        if i < 7: A(f's_add_u32 s27, s27, {64*L.GP}')
    A.end(1, 5)
    return V.hi

NST = 9; RING = 6; STB = 20480
def gen_gemm(A):
    V = VA()
    A(f's_mul_i32 s10, s5, 43\ns_lshr_b32 s10, s10, 8')
    A('s_mul_i32 s11, s10, 6\ns_sub_u32 s11, s5, s11')
    A('s_mul_i32 s24, s4, 6\ns_add_u32 s24, s24, s11')
    A('s_lshr_b32 s25, s24, 4\ns_and_b32 s26, s24, 15')
    lane = V(); t0 = V(); t1 = V()
    A(f'v_and_b32 {v(lane)}, 63, v0')
    A('s_cmp_ge_u32 s3, 4\ns_cbranch_scc1 k2_loader')
    srd(A, 12, 6, L.OFF_H, L.SZ_H); srd(A, 16, 6, L.OFF_PART, L.SZ_PART)
    ho = V()
    A(f'v_lshlrev_b32 {v(ho)}, 4, {v(lane)}')
    A('s_lshl_b32 s27, s26, 2\ns_add_u32 s27, s27, s3')
    A('s_mul_i32 s28, s27, 108\ns_mul_i32 s29, s25, 36\ns_add_u32 s28, s28, s29\ns_lshl_b32 s28, s28, 10')
    HW = 12
    HF = V(4 * HW, 4); ACC = V(80, 4); AF = V(40, 4)
    def hload(k):
        if k % 4 == 0 and k: A('s_add_u32 s28, s28, 4096')
        A(f'buffer_load_dwordx4 {v(HF+4*(k%HW),4)}, {v(ho)}, s[12:15], s28 offen offset:{(k%4)*1024}')
    for k in range(4): hload(k)
    A('s_barrier')
    for k in range(4, 8): hload(k)
    A('s_barrier')
    for k in range(8, HW): hload(k)
    ab = [V(), V()]
    A(f'v_bfe_u32 {v(t0)}, v0, 2, 2')
    A(f'v_bfe_u32 {v(t1)}, v0, 5, 1')
    A(f'v_lshl_add_u32 {v(t0)}, {v(t1)}, 2, {v(t0)}')
    A(f'v_mul_u32_u24 {v(ab[0])}, 320, {v(t0)}')
    A(f'v_bfe_u32 {v(t0)}, v0, 4, 1')
    A(f'v_lshl_add_u32 {v(ab[0])}, {v(t0)}, 5, {v(ab[0])}')
    A(f'v_and_b32 {v(t0)}, 1, v0')
    A(f'v_lshl_add_u32 {v(ab[0])}, {v(t0)}, 4, {v(ab[0])}')
    A(f'v_bfe_u32 {v(t0)}, v0, 1, 1')
    A(f'v_lshl_add_u32 {v(ab[0])}, {v(t0)}, 3, {v(ab[0])}')
    A(f'v_add_u32 {v(ab[1])}, {3*STB}, {v(ab[0])}')
    so = V()
    A(f'v_bfe_u32 {v(t0)}, v0, 2, 3')
    A(f'v_mul_u32_u24 {v(so)}, 5120, {v(t0)}')
    A(f'v_and_b32 {v(t0)}, 3, v0')
    A(f'v_lshl_add_u32 {v(so)}, {v(t0)}, 4, {v(so)}')
    A(f'v_lshl_add_u32 {v(so)}, {v(t1)}, 6, {v(so)}')
    A(f's_mul_i32 s30, s25, {L.SZ_PART1}\ns_mul_i32 s31, s27, 40960\ns_add_u32 s30, s30, s31\ns_mul_i32 s31, s10, 1280\ns_add_u32 s30, s30, s31')
    def rd(k, t):
        st, q = divmod(k, 4); slot = st % RING
        base = ab[slot // 3]; off = (slot % 3) * STB + q * 5120
        for e in range(2):
            A(f'ds_read_b64_tr_b16 {v(AF+(k&1)*20+4*t+2*e,2)}, {v(base)} offset:{off+e*2560+t*64}')
    NK = NST * 4
    A.stamp(1)
    A('s_barrier')
    A.stamp(2)
    for t in range(5): rd(0, t)
    for k in range(NK):
        if k in (12, 24): A.stamp(3 if k == 12 else 4)
        if k + 1 < NK and (k + 1) % 4 == 0: A('s_barrier')
        issued = min(NK, HW + k)
        A(f's_waitcnt vmcnt({issued - k - 1})')
        for t in range(5):
            A(f's_waitcnt lgkmcnt({8 if k + 1 < NK else 8 - 2 * t})')
            A(f'v_mfma_f32_32x32x16_bf16 {v(ACC+16*t,16)}, {v(AF+(k&1)*20+4*t,4)}, {v(HF+4*(k%HW),4)}, {v(ACC+16*t,16) if k else 0}')
            if k + 1 < NK: rd(k + 1, t)
        if k + HW < NK: hload(k + HW)
    A.stamp(5)
    for t in range(5):
        for gp in range(2):
            d = AF + (t * 2 + gp) * 4
            for i in range(4): A(f'v_cvt_pk_bf16_f32 {v(d+i)}, {v(ACC+16*t+8*gp+2*i)}, {v(ACC+16*t+8*gp+2*i+1)}')
            A(f'buffer_store_dwordx4 {v(d,4)}, {v(so)}, s[16:19], s30 offen offset:{t*256+gp*128} sc1')
    A.stamp(6)
    A.end(1, 7)
    hi = V.hi
    A.label('k2_loader')
    V = VA(4)
    srd(A, 12, 8, 0, 1728 * 1280)
    lo = V(5)
    for i in range(5):
        A(f'v_add_u32 {v(t0)}, {64*i}, {v(lane)}')
        A(f'v_mul_u32_u24 {v(t1)}, 3277, {v(t0)}')
        A(f'v_lshrrev_b32 {v(t1)}, 16, {v(t1)}')
        A(f'v_lshlrev_b32 {v(t0)}, 4, {v(t0)}')
        A(f'v_mul_u32_u24 {v(t1)}, 960, {v(t1)}')
        A(f'v_add_u32 {v(lo+i)}, {v(t0)}, {v(t1)}')
    A('s_sub_u32 s27, s3, 4')
    A('s_mul_i32 s28, s25, 36\ns_add_u32 s28, s28, s27\ns_mul_i32 s28, s28, 20480\ns_mul_i32 s29, s10, 320\ns_add_u32 s28, s28, s29')
    A('s_mul_i32 s29, s27, 5120')
    def issue(st):
        slot = st % RING
        for i in range(5):
            A(f's_add_u32 m0, s29, {slot*STB+i*1024}')
            A(f'buffer_load_dwordx4 {v(lo+i)}, s[12:15], s28 offen lds')
        A('s_add_u32 s28, s28, 81920')
    issue(0)
    A('s_barrier')
    issue(1)
    A('s_barrier')
    issue(2)
    issued = 3
    A.stamp(1)
    for st in range(NST):
        A(f's_waitcnt vmcnt({5*(issued-st-1)})')
        A('s_barrier')
        n = 2 if st == 0 else 1
        for _ in range(n):
            if issued < NST and issued - RING + 2 <= st: issue(issued); issued += 1
    A.end(1, 2)
    return hi

def gen_k2(A):
    header(A, 'k2_kernel')
    A('s_cmp_ge_u32 s2, 256\ns_cbranch_scc1 k2_end')
    A('s_load_dwordx2 s[6:7], s[0:1], 80\ns_load_dwordx2 s[8:9], s[0:1], 48')
    A('v_lshrrev_b32 v1, 6, v0')
    A('v_readfirstlane_b32 s3, v1')
    A('s_and_b32 s4, s2, 7\ns_lshr_b32 s5, s2, 3')
    A('s_waitcnt lgkmcnt(0)')
    A.stamp(0)
    A('s_cmp_lt_u32 s5, 24\ns_cbranch_scc1 k2_gemm')
    A('s_sub_u32 s4, s2, 192')
    n1 = gen_fft(A)
    A.label('k2_gemm')
    n2 = gen_gemm(A)
    A.label('k2_end')
    A('s_endpgm')
    return max(n1, n2)
```

```python
import sys, math
from asmlib import *
import layouts as L

NAME = 'recurrent_scan__spectral_gfnet__dense_activation_gelu__prompt'
XB = 2048 * 640 * 2
LOG2E = 1.4426950408889634

class VA:
    def __init__(self, start=1): self.n = start; self.hi = start
    def __call__(self, c=1, al=None):
        al = al or (1 if c == 1 else 2)
        self.n = (self.n + al - 1) // al * al
        r = self.n; self.n += c; self.hi = max(self.hi, self.n); return r
    def mark(self): return self.n
    def reset(self, m): self.n = m

def srd(A, d, base, off, size):
    if off:
        A(f's_add_u32 {s(d)}, {s(base)}, {off}')
        A(f's_addc_u32 {s(d+1)}, {s(base+1)}, 0')
    else:
        A(f's_mov_b32 {s(d)}, {s(base)}')
        A(f's_mov_b32 {s(d+1)}, {s(base+1)}')
    A(f's_mov_b32 {s(d+2)}, {size}')
    A(f's_mov_b32 {s(d+3)}, 0x00020000')

def header(A, name):
    A(f'.globl {name}\n.p2align 8\n.type {name},@function')
    A.label(name)

def desc(name, nv, ns=102):
    acc = (nv + 3) // 4 * 4
    return f'''.amdhsa_kernel {name}
  .amdhsa_next_free_vgpr {nv}
  .amdhsa_next_free_sgpr {ns}
  .amdhsa_accum_offset {acc}
  .amdhsa_group_segment_fixed_size 0
  .amdhsa_kernarg_size 88
  .amdhsa_user_sgpr_count 2
  .amdhsa_user_sgpr_kernarg_segment_ptr 1
  .amdhsa_system_sgpr_workgroup_id_x 1
  .amdhsa_float_denorm_mode_32 3
.end_amdhsa_kernel
'''

def unpack(A, dlo, dhi, src):
    A(f'v_lshlrev_b32 {v(dlo)}, 16, {v(src)}')
    A(f'v_and_b32 {v(dhi)}, 0xffff0000, {v(src)}')

def cmul(A, dr, di, ar, ai, br, bi, t):
    A(f'v_mul_f32 {v(t)}, {v(ai)}, {v(bi)}')
    A(f'v_mul_f32 {v(di)}, {v(ai)}, {v(br)}')
    A(f'v_fmac_f32 {v(di)}, {v(ar)}, {v(bi)}')
    A(f'v_fma_f32 {v(dr)}, {v(ar)}, {v(br)}, -{v(t)}')

K3_LDS = 20480 + 10240
def gen_k3(A):
    header(A, 'k3_kernel')
    V = VA()
    A('s_cmp_ge_u32 s2, 256\ns_cbranch_scc1 k3_end')
    A('s_load_dwordx2 s[4:5], s[0:1], 0\ns_load_dwordx4 s[8:11], s[0:1], 56\ns_load_dwordx2 s[6:7], s[0:1], 80')
    lane, g, j, tp, t0, t1 = V(), V(), V(), V(), V(), V()
    A(f'v_lshrrev_b32 {v(t0)}, 6, v0')
    A(f'v_and_b32 {v(lane)}, 63, v0')
    A(f'v_readfirstlane_b32 s3, {v(t0)}')
    A(f'v_lshrrev_b32 {v(g)}, 4, {v(lane)}')
    A(f'v_and_b32 {v(j)}, 15, v0')
    A('s_cmp_ge_u32 s3, 5\ns_cselect_b32 s32, 1, 0')
    A('s_mul_i32 s33, s32, 320')
    A(f'v_subrev_u32 {v(tp)}, s33, v0')
    A('s_waitcnt lgkmcnt(0)')
    A.stamp(0)
    srd(A, 12, 4, 0, XB); srd(A, 16, 10, 0, XB); srd(A, 20, 6, L.OFF_P, L.SZ_A); srd(A, 24, 6, L.OFF_PART, L.SZ_PART); srd(A, 28, 8, 0, 1280)
    pd = V(8, 4)
    A('s_cmp_ge_u32 s3, 8\ns_cbranch_scc1 k3_noP')
    a0, a1 = V(), V()
    A(f'v_min_u32 {v(t0)}, 10, {v(j)}')
    A(f'v_lshlrev_b32 {v(t0)}, 4, {v(t0)}')
    A(f'v_mul_u32_u24 {v(t1)}, 1280, {v(g)}')
    A(f'v_add_u32 {v(a0)}, {v(t0)}, {v(t1)}')
    A(f'v_sub_u32 {v(a1)}, 4160, {v(a0)}')
    A('s_lshr_b32 s34, s3, 2\ns_lshl_b32 s35, s2, 1\ns_add_u32 s34, s34, s35')
    A(f's_mul_i32 s34, s34, {L.GP}\ns_and_b32 s35, s3, 3\ns_lshl_b32 s35, s35, 2\ns_add_u32 s34, s34, s35')
    for c in range(4): A(f'buffer_load_dword {v(pd+c)}, {v(a0)}, s[20:23], s34 offen offset:{c*320}')
    for c in range(4): A(f'buffer_load_dword {v(pd+4+c)}, {v(a1)}, s[20:23], s34 offen offset:{(3-c)*320}')
    A.label('k3_noP')
    off16 = V(); pt = V(12, 4); bb = V(4, 4); xx = V(4, 4)
    A(f'v_lshlrev_b32 {v(off16)}, 4, {v(tp)}')
    A('s_lshl_b32 s36, s32, 8\ns_add_u32 s36, s36, s2\ns_mul_i32 s36, s36, 5120')
    for ks in range(3):
        if ks: A(f's_add_u32 s{37+ks}, s36, {ks*L.SZ_PART1}')
    for ks in range(3):
        A(f'buffer_load_dwordx4 {v(pt+4*ks,4)}, {v(off16)}, s[24:27], s{37+ks if ks else 36} offen')
    A(f'v_lshrrev_b32 {v(t0)}, 2, {v(tp)}')
    A(f'v_lshlrev_b32 {v(t0)}, 4, {v(t0)}')
    A(f'buffer_load_dwordx4 {v(bb,4)}, {v(t0)}, s[28:31], 0 offen')
    A(f'buffer_load_dwordx4 {v(xx,4)}, {v(off16)}, s[12:15], s36 offen')
    gaddr = V()
    A(f'v_and_b32 {v(t1)}, 3, {v(tp)}')
    A(f'v_mul_u32_u24 {v(t1)}, 1280, {v(t1)}')
    A(f'v_add_u32 {v(gaddr)}, {v(t0)}, {v(t1)}')
    A('s_mul_i32 s40, s32, 5120\ns_add_u32 s40, s40, 20480')
    A(f'v_add_u32 {v(gaddr)}, s40, {v(gaddr)}')
    A('s_cmp_ge_u32 s3, 8\ns_cbranch_scc1 k3_g')
    mk = V.mark()
    fj, fg4, th, st, sgn = V(), V(), V(), V(), V()
    cs = V(4); sn = V(4); cq = V(4); sq_ = V(4)
    B1 = V(32, 4)
    def b1(T, q, part): return B1 + ((T * 2 + q) * 2 + part) * 4
    A(f'v_cvt_f32_u32 {v(fj)}, {v(j)}')
    A(f'v_lshlrev_b32 {v(t0)}, 2, {v(g)}')
    A(f'v_cvt_f32_u32 {v(fg4)}, {v(t0)}')
    A(f'v_mul_f32 {v(st)}, {fh(1/32)}, {v(fj)}')
    A(f'v_mul_f32 {v(th)}, {v(st)}, {v(fg4)}')
    A(f'v_lshlrev_b32 {v(sgn)}, 31, {v(j)}')
    for c in range(4):
        A(f'v_cos_f32 {v(cs+c)}, {v(th)}\nv_sin_f32 {v(sn+c)}, {v(th)}')
        if c < 3: A(f'v_add_f32 {v(th)}, {v(th)}, {v(st)}')
    for c in range(4):
        A(f'v_xor_b32 {v(cq+c)}, {v(sgn)}, {v(cs+c)}\nv_xor_b32 {v(sq_+c)}, {v(sgn)}, {v(sn+c)}')
    for T in range(2):
        for c in range(4):
            ng = (T == 1 and (c & 1))
            P_ = '-' if ng else ''; N_ = '' if ng else '-'
            A(f'v_cvt_pk_bf16_f32 {v(b1(T,0,0)+c)}, {P_}{v(cs+c)}, {N_}{v(sn+c)}')
            A(f'v_cvt_pk_bf16_f32 {v(b1(T,0,1)+c)}, {P_}{v(sn+c)}, {P_}{v(cs+c)}')
            A(f'v_cvt_pk_bf16_f32 {v(b1(T,1,0)+c)}, {P_}{v(cq+c)}, {P_}{v(sq_+c)}')
            A(f'v_cvt_pk_bf16_f32 {v(b1(T,1,1)+c)}, {P_}{v(sq_+c)}, {N_}{v(cq+c)}')
    w = V(4)
    for r in range(4):
        A(f'v_add_u32 {v(t0)}, {r}, {v(g)}' if False else f'v_lshl_add_u32 {v(t0)}, {v(g)}, 2, {r}')
        A(f'v_cmp_gt_u32 vcc, 10, {v(t0)}')
        A(f'v_cndmask_b32 {v(w+r)}, 0, 2.0, vcc')
        if r == 0:
            A(f'v_cmp_eq_u32 vcc, 0, {v(t0)}')
            A(f'v_cndmask_b32 {v(w+r)}, {v(w+r)}, 1.0, vcc')
        if r == 2:
            A(f'v_cmp_eq_u32 vcc, 10, {v(t0)}')
            A(f'v_cndmask_b32 {v(w+r)}, {v(w+r)}, 1.0, vcc')
    twc = V(8); tws = V(8); B2 = V(8, 4)
    fjT = V()
    for T in range(2):
        if T: A(f'v_add_f32 {v(fjT)}, {fh(16.0)}, {v(fj)}')
        src = fjT if T else fj
        A(f'v_mul_f32 {v(st)}, {fh(1/640)}, {v(src)}')
        A(f'v_mul_f32 {v(th)}, {v(st)}, {v(fg4)}')
        for r in range(4):
            A(f'v_cos_f32 {v(twc+4*T+r)}, {v(th)}\nv_sin_f32 {v(tws+4*T+r)}, {v(th)}')
            if r < 3: A(f'v_add_f32 {v(th)}, {v(th)}, {v(st)}')
        A(f'v_mul_f32 {v(st)}, {fh(1/20)}, {v(src)}')
        A(f'v_mul_f32 {v(th)}, {v(st)}, {v(fg4)}')
        for r in range(4):
            A(f'v_cos_f32 {v(cs+r)}, {v(th)}\nv_sin_f32 {v(sn+r)}, {v(th)}')
            if r < 3: A(f'v_add_f32 {v(th)}, {v(th)}, {v(st)}')
        for r in range(4):
            A(f'v_mul_f32 {v(twc+4*T+r)}, {v(twc+4*T+r)}, {v(w+r)}\nv_mul_f32 {v(tws+4*T+r)}, {v(tws+4*T+r)}, {v(w+r)}')
            A(f'v_cvt_pk_bf16_f32 {v(B2+4*T+r)}, {v(cs+r)}, -{v(sn+r)}')
    pw = V()
    A(f'v_lshlrev_b32 {v(pw)}, 7, {v(j)}')
    A(f'v_lshl_add_u32 {v(pw)}, {v(g)}, 4, {v(pw)}')
    A('s_mul_i32 s41, s3, 2560')
    A(f'v_add_u32 {v(pw)}, s41, {v(pw)}')
    D = V(16, 4)
    A.stamp(1)
    A('s_waitcnt vmcnt(5)')
    A.stamp(2)
    for q in range(2):
        for T in range(2):
            for part in range(2):
                d = D + (T * 2 + part) * 4
                A(f'v_mfma_f32_16x16x32_bf16 {v(d,4)}, {v(pd+4*q,4)}, {v(b1(T,q,part),4)}, {v(d,4) if q else 0}')
    U = V(8, 4)
    for T in range(2):
        for r in range(4):
            re = D + T * 8 + r; im = re + 4
            cmul(A, re, im, re, im, twc + 4 * T + r, tws + 4 * T + r, t0 if r & 1 else t1)
            A(f'v_cvt_pk_bf16_f32 {v(U+4*T+r)}, {v(re)}, {v(im)}')
    E = V(16, 4)
    for T in range(2):
        for T1 in range(2):
            A(f'v_mfma_f32_16x16x32_bf16 {v(E+(T*2+T1)*4,4)}, {v(U+4*T,4)}, {v(B2+4*T1,4)}, 0')
    A(f'v_cmp_gt_u32 vcc, 4, {v(j)}')
    for T in range(2): A(f'ds_write_b128 {v(pw)}, {v(E+(T*2)*4,4)} offset:{64*T}')
    A('s_and_saveexec_b64 s[42:43], vcc')
    for T in range(2): A(f'ds_write_b128 {v(pw)}, {v(E+(T*2+1)*4,4)} offset:{2048+64*T}')
    A('s_mov_b64 exec, s[42:43]')
    V.reset(mk)
    A.label('k3_g')
    y = V(8, 2); tt = V(8, 2); gp = V(4, 4)
    A.stamp(3)
    A('s_waitcnt vmcnt(1)')
    A.stamp(4)
    for i in range(4):
        unpack(A, y + 2 * i, y + 2 * i + 1, bb + i)
    for ks in range(3):
        for i in range(4):
            unpack(A, tt + 2 * i, tt + 2 * i + 1, pt + 4 * ks + i)
            A(f'v_pk_add_f32 {v(y+2*i,2)}, {v(y+2*i,2)}, {v(tt+2*i,2)}')
    for i in range(8): A(f'v_mul_f32 {v(tt+i)}, {fh(-LOG2E)}, {v(y+i)}')
    for i in range(8): A(f'v_exp_f32 {v(tt+i)}, {v(tt+i)}')
    SC = 2048.0 * 640.0
    A(f's_mov_b32 s44, {fh(SC)}')
    for i in range(8): A(f'v_fma_f32 {v(tt+i)}, {v(tt+i)}, s44, s44')
    for i in range(8): A(f'v_rcp_f32 {v(tt+i)}, {v(tt+i)}')
    for i in range(4): A(f'v_pk_mul_f32 {v(y+2*i,2)}, {v(y+2*i,2)}, {v(tt+2*i,2)}')
    for i in range(4): A(f'v_cvt_pk_bf16_f32 {v(gp+i)}, {v(y+2*i)}, {v(y+2*i+1)}')
    A(f'ds_write_b128 {v(gaddr)}, {v(gp,4)}')
    ra = V(); rg = V()
    A(f'v_lshlrev_b32 {v(ra)}, 5, {v(tp)}')
    A(f'v_add_u32 {v(rg)}, s40, {v(off16)}')
    A(f's_cmp_eq_u32 s32, 0\ns_cselect_b32 s45, {fh(1.0)}, {fh(-1.0)}')
    A.stamp(5)
    A('s_waitcnt lgkmcnt(0)\ns_barrier')
    A.stamp(6)
    pp = V(8, 4); qq = V(8, 4)
    A(f'ds_read_b128 {v(pp,4)}, {v(ra)}\nds_read_b128 {v(pp+4,4)}, {v(ra)} offset:16')
    A(f'ds_read_b128 {v(qq,4)}, {v(ra)} offset:10240\nds_read_b128 {v(qq+4,4)}, {v(ra)} offset:10256')
    A(f'ds_read_b128 {v(gp,4)}, {v(rg)}')
    A('s_waitcnt vmcnt(0)')
    for i in range(4): unpack(A, y + 2 * i, y + 2 * i + 1, xx + i)
    A('s_waitcnt lgkmcnt(0)')
    for i in range(8): A(f'v_fmac_f32 {v(pp+i)}, s45, {v(qq+i)}')
    for i in range(4): unpack(A, tt + 2 * i, tt + 2 * i + 1, gp + i)
    for i in range(8): A(f'v_fmac_f32 {v(y+i)}, {v(pp+i)}, {v(tt+i)}')
    for i in range(4): A(f'v_cvt_pk_bf16_f32 {v(gp+i)}, {v(y+2*i)}, {v(y+2*i+1)}')
    A(f'buffer_store_dwordx4 {v(gp,4)}, {v(off16)}, s[16:19], s36 offen')
    A.stamp(7)
    A.end(2, 8)
    A.label('k3_end')
    A('s_endpgm')
    return V.hi

def main(out, kernels):
    A = Asm()
    if 'prof' in kernels: A.prof = True
    launches = []; descs = []
    for k in kernels:
        if k == 'k1':
            from gen_k1 import gen_k1, K1_LDS
            nv = gen_k1(A); launches.append(f'; @launch kernel=k1_kernel grid=(256,1,1) block=(512,1,1) lds={K1_LDS}'); descs.append(desc('k1_kernel', nv))
        if k == 'k2':
            from gen_k2 import gen_k2, K2_LDS
            nv = gen_k2(A); launches.append(f'; @launch kernel=k2_kernel grid=(256,1,1) block=(512,1,1) lds={K2_LDS}'); descs.append(desc('k2_kernel', nv))
        if k == 'k3':
            nv = gen_k3(A); launches.append(f'; @launch kernel=k3_kernel grid=(256,1,1) block=(640,1,1) lds={K3_LDS}'); descs.append(desc('k3_kernel', nv))
        if k != 'prof': print(k, 'vgprs', nv, file=sys.stderr)
    body = A.finalize()
    txt = '; generated by dev/gen.py (own generator)\n' + '\n'.join(launches) + '\n'
    txt += '.amdgcn_target "amdgcn-amd-amdhsa--gfx950"\n.text\n' + body
    txt += '.section .rodata,"a"\n' + ''.join('.p2align 6\n' + d for d in descs)
    open(out, 'w').write(txt)

if __name__ == '__main__':
    main(sys.argv[1], sys.argv[2:])
```

```python
import math
from asmlib import *
import layouts as L
from gen import VA, srd, header, unpack, XB, LOG2E, code_prefetch
from gen_k2 import pk_cmul_conj

STAT = 131072
K1_LDS = STAT + 4096
import os
STATS = os.environ.get('STATS', 'B')
PREFETCH_W2 = True
SCHED = lambda k: 2 if k < 8 else 1
BC = 'op_sel_hi:[1,0]'
def rnd_bf16(A, d, src):
    A(f'v_cvt_pk_bf16_f32 {v(d)}, {v(src)}, {v(src)}')
    A(f'v_and_b32 {v(d)}, 0xffff0000, {v(d)}')
def rstd(A, d, var):
    A(f'v_max_f32 {v(d)}, 0, {v(var)}')
    rnd_bf16(A, d, d)
    A(f'v_add_f32 {v(d)}, {fh(1e-5)}, {v(d)}')
    rnd_bf16(A, d, d)
    A(f'v_sqrt_f32 {v(d)}, {v(d)}')
    rnd_bf16(A, d, d)
    A(f'v_rcp_f32 {v(d)}, {v(d)}')
def allred16(A, x):
    for n in (8, 4, 2, 1):
        A(f'v_add_f32_dpp {v(x)}, {v(x)}, {v(x)} row_ror:{n} row_mask:0xf bank_mask:0xf')

def gen_fft(A):
    V = VA()
    A.label('k1_fft')
    A('s_sub_u32 s4, s2, 224')
    A('s_waitcnt lgkmcnt(0)')
    srd(A, 12, 8, 0, XB)
    srd(A, 24, 6, L.OFF_A, L.SZ_A)
    A('s_lshl_b32 s32, s4, 3\ns_add_u32 s32, s32, s3')
    A('s_lshr_b32 s33, s32, 5\ns_lshl_b32 s33, s33, 7\ns_and_b32 s34, s32, 31\ns_add_u32 s33, s33, s34')
    A(f's_mul_i32 s34, s33, 1280\ns_add_u32 s35, s34, {1024*1280}')
    lane, g, j, t0, t1, t2 = V(), V(), V(), V(), V(), V()
    A(f'v_and_b32 {v(lane)}, 63, v0')
    A(f'v_lshrrev_b32 {v(g)}, 4, {v(lane)}')
    A(f'v_and_b32 {v(j)}, 15, v0')
    A(f'v_mul_u32_u24 {v(t0)}, {32*1280}, {v(g)}')
    A(f'v_lshl_add_u32 {v(t0)}, {v(j)}, 4, {v(t0)}')
    XP = V(40, 4)
    for b in range(2):
        for i in range(5): A(f'buffer_load_dwordx4 {v(XP+20*b+4*i,4)}, {v(t0)}, s[12:15], s{34+b} offen offset:{256*i}')
    C1 = V(4, 4); S1 = V(4, 4); TC = V(8, 2); TS = V(8, 2); M = V(32, 4)
    wa, r1, r2, o0, o1, o1z = V(), V(), V(), V(), V(), V()
    mk = V.mark()
    fj, fg4, th, st, sgn = V(), V(), V(), V(), V()
    cs = V(8); sn = V(8)
    def m2(T2, T, part): return M + ((T2 * 2 + T) * 2 + part) * 4
    A(f'v_cvt_f32_u32 {v(fj)}, {v(j)}')
    A(f'v_lshlrev_b32 {v(t2)}, 2, {v(g)}')
    A(f'v_cvt_f32_u32 {v(fg4)}, {v(t2)}')
    def angles(scale, list_u, base_g, dc, ds):
        A(f'v_mul_f32 {v(st)}, {fh(scale)}, {v(fj)}')
        if base_g: A(f'v_mul_f32 {v(th)}, {v(st)}, {v(fg4)}')
        for n, u in enumerate(list_u):
            if base_g:
                if u: A(f'v_fmamk_f32 {v(ds+n)}, {v(st)}, {fh(float(u))}, {v(th)}'); an = ds + n
                else: an = th
            else: A(f'v_mul_f32 {v(ds+n)}, {fh(float(u))}, {v(st)}'); an = ds + n
            A(f'v_cos_f32 {v(dc+n)}, {v(an)}\nv_sin_f32 {v(ds+n)}, {v(an)}')
    angles(1 / 20, [0, 1, 2, 3], True, cs, sn)
    angles(1 / 20, [16, 17, 18, 19], False, cs + 4, sn + 4)
    A(f'v_cmp_eq_u32 vcc, 0, {v(g)}')
    for i in range(4):
        A(f'v_cvt_pk_bf16_f32 {v(C1+i)}, {v(cs+2*i)}, {v(cs+2*i+1)}')
        A(f'v_cvt_pk_bf16_f32 {v(S1+i)}, -{v(sn+2*i)}, -{v(sn+2*i+1)}')
    for i in (2, 3):
        A(f'v_cndmask_b32 {v(C1+i)}, 0, {v(C1+i)}, vcc\nv_cndmask_b32 {v(S1+i)}, 0, {v(S1+i)}, vcc')
    angles(1 / 640, [0, 1, 2, 3, 16, 17, 18, 19], True, TC, TS)
    angles(1 / 32, [0, 1, 2, 3], True, cs, sn)
    A(f'v_lshlrev_b32 {v(sgn)}, 31, {v(j)}')
    for c in range(4): A(f'v_xor_b32 {v(cs+4+c)}, {v(sgn)}, {v(cs+c)}\nv_xor_b32 {v(sn+4+c)}, {v(sgn)}, {v(sn+c)}')
    for T2 in range(2):
        for T in range(2):
            for c in range(4):
                ng = (T2 == 1 and (c & 1)); P_ = '-' if ng else ''; N_ = '' if ng else '-'
                A(f'v_cvt_pk_bf16_f32 {v(m2(T2,T,0)+c)}, {P_}{v(cs+4*T+c)}, {P_}{v(sn+4*T+c)}')
                A(f'v_cvt_pk_bf16_f32 {v(m2(T2,T,1)+c)}, {N_}{v(sn+4*T+c)}, {P_}{v(cs+4*T+c)}')
    A('s_mul_i32 s37, s3, 10240')
    A(f'v_mul_u32_u24 {v(wa)}, 1280, {v(g)}')
    A(f'v_lshl_add_u32 {v(o0)}, {v(j)}, 4, {v(wa)}')
    A(f'v_add_u32 {v(wa)}, s37, {v(o0)}')
    A(f'v_bfe_u32 {v(t0)}, v0, 2, 2')
    A(f'v_and_b32 {v(t1)}, 3, v0')
    A(f'v_lshlrev_b32 {v(t1)}, 3, {v(t1)}')
    A(f'v_lshl_add_u32 {v(t1)}, {v(t0)}, 6, {v(t1)}')
    A(f'v_add_u32 {v(t1)}, s37, {v(t1)}')
    A(f'v_lshl_add_u32 {v(r1)}, {v(g)}, 8, {v(t1)}')
    A(f'v_add_u32 {v(r2)}, 1024, {v(t1)}')
    A(f'v_sub_u32 {v(o1)}, 4160, {v(o0)}')
    A(f'v_mov_b32 {v(t2)}, 0x40000000')
    A(f'v_cmp_gt_u32 vcc, 11, {v(j)}')
    A(f'v_cndmask_b32 {v(o0)}, {v(t2)}, {v(o0)}, vcc')
    A(f'v_subrev_u32 {v(t0)}, 1, {v(j)}')
    A(f'v_cmp_eq_u32 s[38:39], 0, {v(lane)}')
    A(f'v_cmp_gt_u32 vcc, 9, {v(t0)}')
    A(f'v_cndmask_b32 {v(o1z)}, {v(t2)}, {v(o1)}, s[38:39]')
    A(f'v_cndmask_b32 {v(o1z)}, {v(o1z)}, {v(o1)}, vcc')
    A(f'v_cndmask_b32 {v(o1)}, {v(t2)}, {v(o1)}, vcc')
    V.reset(mk)
    U = V(80, 4); rs = V(4, 4); sm = V(4, 2); mb = V(4, 2); dl = V(2)
    A.stamp(1)
    sq = V(4, 2); a2 = V(4, 2)
    A('s_setprio 2')
    for b in range(2):
        A(f's_waitcnt vmcnt({5*(1-b)})')
        if b == 0: A.stamp(2)
        u = U + 40 * b; acc = sm + 2 * b; qa = sq + 2 * b
        for i in range(20): unpack(A, u + 2 * i, u + 2 * i + 1, XP + 20 * b + i)
        A(f'v_pk_add_f32 {v(acc,2)}, {v(u,2)}, {v(u+2,2)}')
        A(f'v_pk_mul_f32 {v(qa,2)}, {v(u,2)}, {v(u,2)}')
        A(f'v_pk_add_f32 {v(a2,2)}, {v(u+4,2)}, {v(u+6,2)}')
        A(f'v_pk_mul_f32 {v(a2+2,2)}, {v(u+2,2)}, {v(u+2,2)}')
        for i in range(2, 20, 2):
            if i >= 4: A(f'v_pk_add_f32 {v(acc,2)}, {v(acc,2)}, {v(u+2*i,2)}')
            A(f'v_pk_fma_f32 {v(qa,2)}, {v(u+2*i,2)}, {v(u+2*i,2)}, {v(qa,2)}')
            if i >= 4: A(f'v_pk_add_f32 {v(a2,2)}, {v(a2,2)}, {v(u+2*i+2,2)}')
            A(f'v_pk_fma_f32 {v(a2+2,2)}, {v(u+2*i+2,2)}, {v(u+2*i+2,2)}, {v(a2+2,2)}')
        A(f'v_pk_add_f32 {v(acc,2)}, {v(acc,2)}, {v(a2,2)}')
        A(f'v_pk_add_f32 {v(qa,2)}, {v(qa,2)}, {v(a2+2,2)}')
        A(f'v_add_f32 {v(acc)}, {v(acc)}, {v(acc+1)}\nv_add_f32 {v(qa)}, {v(qa)}, {v(qa+1)}')
    for n in (8, 4, 2, 1):
        for x in (sm, sq, sm + 2, sq + 2): A(f'v_add_f32_dpp {v(x)}, {v(x)}, {v(x)} row_ror:{n} row_mask:0xf bank_mask:0xf')
    for b in range(2):
        A(f'v_mul_f32 {v(sm+2*b)}, {fh(1/640)}, {v(sm+2*b)}\nv_mul_f32 {v(sq+2*b)}, {fh(1/640)}, {v(sq+2*b)}')
        A(f'v_fma_f32 {v(sq+2*b)}, -{v(sm+2*b)}, {v(sm+2*b)}, {v(sq+2*b)}')
        rnd_bf16(A, mb + 2 * b, sm + 2 * b)
    for b in range(2): rstd(A, rs + 2 * b, sq + 2 * b)
    for b in range(2): A(f'v_mul_f32 {v(rs+2*b+1)}, {v(rs+2*b)}, {v(mb+2*b)}')
    srd(A, 16, 6, L.OFF_ST, L.SZ_ST); srd(A, 20, 50, 0, 256)
    A(f'v_lshlrev_b32 {v(dl)}, 4, {v(j)}\nv_lshl_add_u32 {v(dl)}, {v(g)}, 5, {v(dl)}')
    A('s_lshl_b32 s54, s32, 7')
    A('s_mov_b32 exec_lo, 0x00030003\ns_mov_b32 exec_hi, 0x00030003')
    A(f'buffer_store_dwordx4 {v(rs,4)}, {v(dl)}, s[16:19], s54 offen sc1')
    A('s_mov_b64 exec, -1')
    def signal():
        A(f's_lshr_b32 s54, s32, 5\ns_lshl_b32 s54, s54, 5\nv_mov_b32 {v(t0)}, 0\nv_mov_b32 {v(t1)}, 1')
        A('s_waitcnt vmcnt(0)\ns_barrier')
        A('s_cmp_lg_u32 s3, 0\ns_cbranch_scc1 k1_nosig')
        A('s_mov_b64 exec, 1')
        A(f'buffer_atomic_add {v(t1)}, {v(t0)}, s[20:23], s54 offen sc1')
        A('s_mov_b64 exec, -1')
        A.label('k1_nosig')
        A.stamp(3)
    A('s_setprio 0')
    for i in range(20):
        a_, b_ = U + 2 * i, U + 40 + 2 * i
        t = sm + 2 * (i & 1)
        A(f'v_pk_fma_f32 {v(t,2)}, {v(a_,2)}, {v(rs,2)}, {v(rs,2)} op_sel:[0,0,1] op_sel_hi:[1,0,1] neg_lo:[0,0,1] neg_hi:[0,0,1]')
        A(f'v_pk_fma_f32 {v(b_,2)}, {v(b_,2)}, {v(rs+2,2)}, {v(rs+2,2)} op_sel:[0,0,1] op_sel_hi:[1,0,1] neg_lo:[0,0,1] neg_hi:[0,0,1]')
        A(f'v_pk_add_f32 {v(a_,2)}, {v(t,2)}, {v(b_,2)}')
        A(f'v_pk_add_f32 {v(b_,2)}, {v(t,2)}, {v(b_,2)} neg_lo:[0,1] neg_hi:[0,1]')
        if i == SIGI: signal()
        A(f'v_cvt_pk_bf16_f32 {v(XP+i)}, {v(a_)}, {v(a_+1)}')
        A(f'v_cvt_pk_bf16_f32 {v(XP+20+i)}, {v(b_)}, {v(b_+1)}')
        if i % 4 == 3:
            for b in range(2): A(f'ds_write_b128 {v(wa)}, {v(XP+20*b+i-3,4)} offset:{5120*b+256*(i//4)}')
    V.reset(mk)
    DA = V(32, 4); D1 = XP; tp = V(4, 2); PO = V(32, 4); lo16 = V(); lr = V()
    OB = 81920
    A(f's_mul_i32 s44, s32, {2*L.GP}')
    A(f's_mul_i32 s46, s3, 6144\ns_add_u32 s46, s46, {OB}')
    A(f'v_lshlrev_b32 {v(lo16)}, 4, {v(lane)}')
    A(f'v_add_u32 {v(lr)}, s46, {v(lo16)}')
    A(f'v_mov_b32 {v(t0)}, 5152')
    for o in (o0, o1, o1z):
        A(f'v_min_u32 {v(o)}, {v(o)}, {v(t0)}\nv_add_u32 {v(o)}, s46, {v(o)}')
    A('s_mov_b32 s45, 0')
    A('s_waitcnt lgkmcnt(0)')
    A.label('k1_fft_loop')
    def d1(row, T, part): return D1 + (((row & 1) * 2 + T) * 2 + part) * 4
    for row in range(4):
        for T in range(2):
            A(f'ds_read_b64_tr_b16 {v(DA+(row*2+T)*4,2)}, {v(r1)} offset:{row*1280+T*32}')
            A(f'ds_read_b64_tr_b16 {v(DA+(row*2+T)*4+2,2)}, {v(r2)} offset:{row*1280+T*32}')
    A(f'v_add_u32 {v(r1)}, 5120, {v(r1)}\nv_add_u32 {v(r2)}, 5120, {v(r2)}')
    def s1(row):
        A(f's_waitcnt lgkmcnt({12-4*row})')
        for T in range(2):
            A(f'v_mfma_f32_16x16x32_bf16 {v(d1(row,T,0),4)}, {v(DA+(row*2+T)*4,4)}, {v(C1,4)}, 0')
            A(f'v_mfma_f32_16x16x32_bf16 {v(d1(row,T,1),4)}, {v(DA+(row*2+T)*4,4)}, {v(S1,4)}, 0')
    def tw(row):
        for T in range(2):
            for k in (0, 2):
                pk_cmul_conj(A, d1(row,T,0) + k, d1(row,T,1) + k, TC + 4 * T + k, TS + 4 * T + k, tp + k)
            for k in range(4): A(f'v_cvt_pk_bf16_f32 {v(DA+(row*2+T)*4+k)}, {v(d1(row,T,0)+k)}, {v(d1(row,T,1)+k)}')
    def s2(row):
        for T in range(2):
            for T2 in range(2):
                for part in range(2):
                    d = d1(row, T2, part)
                    A(f'v_mfma_f32_16x16x32_bf16 {v(d,4)}, {v(m2(T2,T,part),4)}, {v(DA+(row*2+T)*4,4)}, {v(d,4) if T else 0}')
    def po(row):
        for T2 in range(2):
            for r in range(4):
                A(f'v_cvt_pk_bf16_f32 {v(PO+(T2*4+r)*4+row)}, {v(d1(row,T2,0)+r)}, {"-" if T2 else ""}{v(d1(row,T2,1)+r)}')
    s1(0); s1(1); tw(0); s2(0); tw(1); s2(1); po(0); s1(2); po(1); s1(3); tw(2); s2(2); tw(3); s2(3); po(2); po(3)
    for r in range(4): A(f'ds_write_b128 {v(o0)}, {v(PO+r*4,4)} offset:{r*320}')
    for r in range(4): A(f'ds_write_b128 {v(o1 if r else o1z)}, {v(PO+(4+r)*4,4)} offset:{(3-r)*320}')
    A('s_waitcnt lgkmcnt(0)')
    for i in range(6): A(f'ds_read_b128 {v(PO+4*i,4)}, {v(lr)} offset:{1024*i}')
    A('s_add_u32 s47, s44, 4096')
    for i in range(6):
        A(f's_waitcnt lgkmcnt({5-i})')
        if i == 5: A('s_mov_b64 exec, 15')
        A(f'buffer_store_dwordx4 {v(PO+4*i,4)}, {v(lo16)}, s[24:27], s{44 if i < 4 else 47} offen offset:{1024*(i%4)} sc1')
    A('s_mov_b64 exec, -1')
    A(f's_add_u32 s44, s44, {L.GP}\ns_add_u32 s45, s45, 1\ns_cmp_lt_u32 s45, 2\ns_cbranch_scc1 k1_fft_loop')
    A.stamp(4)
    A.end(0, 5)
    return V.hi

SIGI = 10
NST = 10; RING = 4; WK = 5; POLL = int(os.environ.get('POLL', 4))
WST = STAT + 4096
def gen_gemm(A):
    V = VA()
    A('s_and_b32 s10, s4, 3\ns_lshl_b32 s10, s10, 2\ns_and_b32 s11, s5, 3\ns_add_u32 s10, s10, s11')
    A('s_lshr_b32 s11, s4, 2\ns_mul_i32 s11, s11, 7\ns_lshr_b32 s28, s5, 2\ns_add_u32 s11, s11, s28')
    lane, t0, t1, t2 = V(), V(), V(), V()
    A(f'v_and_b32 {v(lane)}, 63, v0')
    A('s_cmp_lt_u32 s3, 4\ns_cbranch_scc1 k1_comp')
    base_mark = V.mark()
    A('s_sub_u32 s29, s3, 4')
    A('s_lshl_b32 s31, s11, 8')
    xo = V(2); wo = V()
    A(f'v_lshrrev_b32 {v(t0)}, 3, {v(lane)}')
    A(f'v_lshrrev_b32 {v(t1)}, 4, {v(lane)}')
    A(f'v_and_b32 {v(t2)}, 7, v0')
    A(f'v_xor_b32 {v(t2)}, {v(t2)}, {v(t1)}')
    A(f'v_mul_u32_u24 {v(xo)}, 1280, {v(t0)}')
    A(f'v_lshl_add_u32 {v(xo)}, {v(t2)}, 4, {v(xo)}')
    A(f'v_xor_b32 {v(xo+1)}, 64, {v(xo)}')
    A(f'v_add_u32 {v(xo+1)}, {8*1280}, {v(xo+1)}')
    A(f'v_lshlrev_b32 {v(t0)}, 2, {v(t1)}')
    A(f'v_and_b32 {v(t2)}, 15, v0')
    A(f'v_xor_b32 {v(t2)}, {v(t2)}, {v(t0)}')
    A(f'v_mul_u32_u24 {v(wo)}, 3456, {v(t1)}')
    A(f'v_lshl_add_u32 {v(wo)}, {v(t2)}, 4, {v(wo)}')
    A('s_add_u32 s32, s10, s11\ns_and_b32 s32, s32, 3\ns_mul_i32 s32, s32, 5\ns_lshr_b32 s32, s32, 1')
    A('s_lshl_b32 s33, s10, 2\ns_add_u32 s33, s33, s29\ns_mul_i32 s33, s33, 40960')
    A(f's_mul_i32 s34, s29, {16*3456}\ns_add_u32 s34, s34, s31')
    A('s_lshl_b32 s35, s29, 12')
    def issue(st):
        slot = st % RING
        A(f's_lshl_b32 s36, s32, 7\ns_add_u32 s36, s36, s33\ns_mul_i32 s37, s32, {64*3456}\ns_add_u32 s37, s37, s34')
        for n in range(4):
            A(f's_add_u32 m0, s35, {slot*16384+1024*n}')
            if n == 2: A('s_add_u32 s36, s36, 20480')
            A(f'buffer_load_dwordx4 {v(xo+(n&1))}, s[12:15], s36 offen lds')
            A(f's_add_u32 m0, s35, {65536+slot*16384+1024*n}')
            if n: A(f's_add_u32 s37, s37, {4*3456}')
            A(f'buffer_load_dwordx4 {v(wo)}, s[16:19], s37 offen lds')
        A('s_add_u32 s32, s32, 1\ns_cmp_eq_u32 s32, 10\ns_cselect_b32 s32, 0, s32')
    A('s_waitcnt lgkmcnt(0)')
    srd(A, 12, 8, 0, XB); srd(A, 16, 44, 0, 640 * 3456)
    issue(0)
    issue(1)
    srd(A, 64, 50, 0, 256)
    zero = V(); pv = V(); SD = V(8, 4); sto = V(); stw = V()
    WL = V(16, 4); PC = V(16, 4); PF = V(12, 4); wwa, wra = V(), V(); wso = V(4)
    A(f'v_mov_b32 {v(zero)}, 0')
    A('s_and_b32 s68, s10, 7\ns_lshl_b32 s69, s68, 12\ns_lshl_b32 s68, s68, 5')
    A(f'v_and_b32 {v(t0)}, 31, v0\nv_lshlrev_b32 {v(sto)}, 7, {v(t0)}\nv_and_b32 {v(t0)}, 32, v0\nv_add_u32 {v(sto)}, {v(sto)}, {v(t0)}')
    A(f'v_lshlrev_b32 {v(stw)}, 4, {v(lane)}\nv_add_u32 {v(stw)}, {STAT+1024}, {v(stw)}')
    A.stamp(1)
    seq = ['d0'] * 8 + ['d1'] * 8
    def wait_for(tag):
        last = max(i for i, t in enumerate(seq) if t == tag)
        A(f's_waitcnt vmcnt({len(seq) - 1 - last})')
    issued = 2
    for st in range(NST - 1):
        wait_for(f'd{st}' if st < NST - 2 else f'd{NST-1}')
        A('s_barrier')
        while issued < NST and issued <= st + 3: issue(issued); seq += [f'd{issued}'] * 8; issued += 1
        if st == POLL:
            A(f'buffer_load_dword {v(pv)}, {v(zero)}, s[64:67], s68 offen sc1'); seq += ['poll']
        if st == NST - 4:
            srd(A, 52, 6, L.OFF_ST, L.SZ_ST)
            A('s_cmp_lg_u32 s29, 0\ns_cbranch_scc1 k1_nost')
            wait_for('poll')
            A(f'v_readfirstlane_b32 s44, {v(pv)}')
            A('s_cmp_ge_u32 s44, 4\ns_cbranch_scc0 k1_nost')
            A(f'buffer_load_dwordx4 {v(SD,4)}, {v(sto)}, s[52:55], s69 offen sc1')
            A(f'buffer_load_dwordx4 {v(SD+4,4)}, {v(sto)}, s[52:55], s69 offen offset:64 sc1')
            A.label('k1_nost')
        if st == NST - 3:
            A(f'v_lshlrev_b32 {v(t1)}, 3, {v(lane)}\nv_lshlrev_b32 {v(t0)}, 4, {v(lane)}')
            srd(A, 56, 48, 0, 1728 * 1280)
            A('s_lshl_b32 s50, s2, 2\ns_add_u32 s50, s50, s29\ns_mul_i32 s50, s50, 2560')
            A(f'buffer_load_dwordx4 {v(PF,4)}, {v(t0)}, s[56:59], s50 offen')
            A(f'buffer_load_dwordx4 {v(PF+4,4)}, {v(t0)}, s[56:59], s50 offen offset:1024')
            A(f'buffer_load_dwordx2 {v(PF+8,2)}, {v(t1)}, s[56:59], s50 offen offset:2048')
            srd(A, 20, 40, 0, 2048 * 642); srd(A, 24, 42, 0, 2048 * 642)
            A('s_lshl_b32 s50, s2, 2\ns_add_u32 s50, s50, s29\ns_mul_i32 s50, s50, 1536')
            for pl in range(2):
                A(f'buffer_load_dwordx4 {v(WL+8*pl,4)}, {v(t0)}, s[{20+4*pl}:{23+4*pl}], s50 offen')
                A(f'buffer_load_dwordx2 {v(WL+8*pl+4,2)}, {v(t1)}, s[{20+4*pl}:{23+4*pl}], s50 offen offset:1024')
            seq += ['pf'] * 7
    A('s_cmp_lg_u32 s29, 0\ns_cbranch_scc1 k1_lfin')
    A('s_cmp_ge_u32 s44, 4\ns_cbranch_scc1 k1_havest')
    A('s_mov_b32 s45, 0')
    A.label('k1_poll')
    A(f'buffer_load_dword {v(pv)}, {v(zero)}, s[64:67], s68 offen sc1')
    A('s_waitcnt vmcnt(0)')
    A(f'v_readfirstlane_b32 s44, {v(pv)}')
    A('s_cmp_ge_u32 s44, 4\ns_cbranch_scc1 k1_polled')
    A('s_add_u32 s45, s45, 1\ns_cmp_ge_u32 s45, 400\ns_cbranch_scc1 k1_slow')
    A('s_sleep 4')
    A('s_branch k1_poll')
    A.label('k1_polled')
    A(f'buffer_load_dwordx4 {v(SD,4)}, {v(sto)}, s[52:55], s69 offen sc1')
    A(f'buffer_load_dwordx4 {v(SD+4,4)}, {v(sto)}, s[52:55], s69 offen offset:64 sc1')
    A('s_waitcnt vmcnt(0)')
    A.label('k1_havest')
    A('s_waitcnt vmcnt(7)')
    A(f'ds_write_b128 {v(stw)}, {v(SD,4)}\nds_write_b128 {v(stw)}, {v(SD+4,4)} offset:1024')
    A.label('k1_lfin')
    A('s_waitcnt lgkmcnt(0)\ns_barrier')
    A.end(0, 2)
    A.label('k1_slow')
    sm, sq = V(), V(); UP = V(2)
    A(f'v_mul_u32_u24 {v(t0)}, 1280, {v(lane)}')
    A(f's_mul_i32 s40, s10, {128*1280}\ns_mov_b32 s41, 0')
    A.label('k1_slow_rows')
    A(f'v_mov_b32 {v(sm)}, 0\nv_mov_b32 {v(sq)}, 0\ns_mov_b32 s42, 0')
    A.label('k1_slow_k')
    A('s_add_u32 s43, s40, s42')
    A(f'buffer_load_dwordx4 {v(SD,4)}, {v(t0)}, s[12:15], s43 offen')
    A('s_waitcnt vmcnt(0)')
    for i in range(4):
        unpack(A, UP, UP + 1, SD + i)
        for e in range(2): A(f'v_add_f32 {v(sm)}, {v(sm)}, {v(UP+e)}\nv_fmac_f32 {v(sq)}, {v(UP+e)}, {v(UP+e)}')
    A('s_add_u32 s42, s42, 16\ns_cmp_lt_u32 s42, 1280\ns_cbranch_scc1 k1_slow_k')
    A(f'v_mul_f32 {v(sm)}, {fh(1/640)}, {v(sm)}\nv_mul_f32 {v(sq)}, {fh(1/640)}, {v(sq)}')
    A(f'v_fma_f32 {v(sq)}, -{v(sm)}, {v(sm)}, {v(sq)}')
    rstd(A, SD, sq)
    rnd_bf16(A, sm, sm)
    A(f'v_mul_f32 {v(SD+1)}, {v(SD)}, {v(sm)}\nv_mov_b32 {v(SD+2)}, {v(SD)}')
    A(f'v_mov_b32 {v(SD+3)}, {v(SD+1)}')
    A(f'ds_write_b128 {v(stw)}, {v(SD,4)}')
    A(f'v_add_u32 {v(stw)}, 1024, {v(stw)}')
    A(f's_add_u32 s40, s40, {64*1280}\ns_add_u32 s41, s41, 1\ns_cmp_lt_u32 s41, 2')
    A('s_waitcnt lgkmcnt(0)')
    A('s_cbranch_scc1 k1_slow_rows')
    A('s_branch k1_lfin')
    hi = V.hi
    A.label('k1_comp')
    V.reset(base_mark)
    b1r = V(2, 2); b1a = V()
    A('s_waitcnt lgkmcnt(0)')
    srd(A, 56, 46, 0, 3456)
    A(f'v_lshlrev_b32 {v(t0)}, 2, {v(lane)}\ns_lshl_b32 s31, s11, 8')
    A(f'buffer_load_dword {v(b1r)}, {v(t0)}, s[56:59], s31 offen')
    A(f'v_lshlrev_b32 {v(b1a)}, 3, {v(lane)}\nv_add_u32 {v(b1a)}, {STAT}, {v(b1a)}')
    srd(A, 24, 6, L.OFF_H, L.SZ_H)
    A('s_and_b32 s30, s3, 1\ns_lshr_b32 s29, s3, 1')
    xa = V(4); wa = V(2); j, h = V(), V()
    A(f'v_and_b32 {v(j)}, 31, v0\nv_bfe_u32 {v(h)}, v0, 5, 1')
    A(f'v_bfe_u32 {v(t0)}, v0, 1, 3\nv_xor_b32 {v(t0)}, {v(t0)}, {v(h)}\nv_lshlrev_b32 {v(t0)}, 4, {v(t0)}')
    A(f'v_lshl_add_u32 {v(t0)}, {v(j)}, 7, {v(t0)}')
    A('s_lshl_b32 s40, s29, 13')
    A(f'v_add_u32 {v(xa)}, s40, {v(t0)}')
    for p in range(1, 4): A(f'v_xor_b32 {v(xa+p)}, {32*p}, {v(xa)}')
    A(f'v_bfe_u32 {v(t0)}, v0, 2, 2')
    A(f'v_lshl_add_u32 {v(t1)}, {v(h)}, 3, {v(t0)}')
    A(f'v_lshlrev_b32 {v(t1)}, 8, {v(t1)}')
    A(f'v_bfe_u32 {v(t2)}, v0, 4, 1')
    A(f'v_lshl_add_u32 {v(t1)}, {v(t2)}, 5, {v(t1)}')
    A(f'v_and_b32 {v(t2)}, 3, v0')
    A(f'v_lshl_add_u32 {v(t1)}, {v(t2)}, 3, {v(t1)}')
    A(f'v_lshl_add_u32 {v(t1)}, {v(t0)}, 6, {v(t1)}')
    A('s_lshl_b32 s41, s30, 1\ns_or_b32 s41, s41, s29\ns_lshl_b32 s41, s41, 6\ns_or_b32 s41, s41, 65536')
    A(f'v_xor_b32 {v(wa)}, s41, {v(t1)}\nv_xor_b32 {v(wa+1)}, 64, {v(wa)}')
    SEL = V(4, 4)
    A(f'v_lshrrev_b32 {v(t0)}, 2, v0\nv_xor_b32 {v(t0)}, {v(t0)}, v0\nv_and_b32 {v(t0)}, 4, {v(t0)}')
    A(f'v_cmp_eq_u32 vcc, 0, {v(t0)}')
    A(f'v_mov_b32 {v(t0)}, 0x3f803f80')
    for i in range(4): A(f'v_cndmask_b32 {v(SEL+i)}, 0, {v(t0)}, vcc')
    A(f'v_and_b32 {v(t0)}, 11, v0\nv_cmp_eq_u32 s[98:99], 0, {v(t0)}')
    cw, ca, sra, ho = V(), V(2), V(), V()
    A(f's_lshl_b32 s40, s30, 8\ns_lshl_b32 s41, s29, 7\ns_add_u32 s40, s40, s41\ns_add_u32 s40, s40, {STAT}')
    A(f'v_and_b32 {v(t1)}, 48, v0\nv_bfe_u32 {v(t0)}, v0, 2, 1')
    A(f'v_lshl_add_u32 {v(t1)}, {v(t0)}, 6, {v(t1)}')
    A(f'v_add_u32 {v(cw)}, s40, {v(t1)}')
    A(f'v_lshl_add_u32 {v(ca)}, {v(h)}, 4, s40')
    A(f'v_xor_b32 {v(ca+1)}, 128, {v(ca)}')
    A(f's_lshl_b32 s40, s29, 10\ns_and_b32 s41, s10, 8\ns_add_u32 s40, s40, s41\ns_add_u32 s40, s40, {STAT+1024}')
    A(f'v_lshl_add_u32 {v(sra)}, {v(j)}, 4, s40')
    k1 = V(2, 2); k2 = V(2, 2); one = V(2, 2)
    c1 = -2 * math.sqrt(2 / math.pi) * LOG2E
    A(f'v_mov_b32 {v(k1)}, {fh(c1)}\nv_mov_b32 {v(k2)}, {fh(c1*0.044715)}\nv_mov_b32 {v(one)}, 1.0')
    A(f'v_lshlrev_b32 {v(ho)}, 4, {v(lane)}')
    A('s_lshl_b32 s40, s10, 1\ns_add_u32 s40, s40, s29\ns_mul_i32 s40, s40, 216\ns_lshl_b32 s41, s11, 3\ns_add_u32 s40, s40, s41')
    A('s_lshl_b32 s41, s30, 2\ns_add_u32 s40, s40, s41\ns_lshl_b32 s40, s40, 10')
    A('s_lshl_b32 s41, s29, 11\ns_add_u32 s44, s40, s41\ns_xor_b32 s41, s41, 2048\ns_add_u32 s46, s40, s41')
    A(f's_add_u32 s45, s44, {108*1024}\ns_add_u32 s47, s46, {108*1024}')
    ACC = V(64, 4); CS = V(4, 4)
    mk = V.mark()
    NB = 4
    XF = V(8 * NB, 4); WF = V(8 * NB, 4)
    def rd(k):
        st, p = divmod(k, 4); off = (st % RING) * 16384; b = k % NB
        out = []
        for t in range(2):
            out.append(f'ds_read_b128 {v(XF+8*b+4*t,4)}, {v(xa+p)} offset:{off+4096*t}')
            for e in range(2):
                out.append(f'ds_read_b64_tr_b16 {v(WF+8*b+4*t+2*e,2)}, {v(wa+t)} offset:{off+4096*p+1024*e}')
        return out
    NK = 4 * NST
    A.stamp(1)
    A('s_barrier')
    A.stamp(2)
    for x in rd(0) + rd(1): A(x)
    for k in range(NK):
        st, p = divmod(k, 4); b = k % NB
        if k in (13, 25): A.stamp(3 if k == 13 else 4)
        nxt = rd(k + 2) if k + 2 < NK else []
        A(f's_waitcnt lgkmcnt({6 if k + 1 < NK else 0})')
        for n, (t, u) in enumerate(((0, 0), (0, 1), (1, 1), (1, 0))):
            d = v(ACC + (t * 2 + u) * 16, 16)
            A(f'v_mfma_f32_32x32x16_bf16 {d}, {v(WF+8*b+4*t,4)}, {v(XF+8*b+4*u,4)}, {d if k else 0}')
            if n == 0 and p == 2 and st < NST - 2: A('s_waitcnt lgkmcnt(0)\ns_barrier')
            for x in nxt[2*n:2*n+2]: A(x)
        A(f'v_mfma_f32_16x16x32_bf16 {v(CS,4)}, {v(WF+8*b,4)}, {v(SEL,4)}, {v(CS,4) if k else 0}')
        if k == WK:
            A('s_waitcnt vmcnt(0)')
            A(f'v_and_b32 {v(b1r+1)}, 0xffff0000, {v(b1r)}\nv_lshlrev_b32 {v(b1r)}, 16, {v(b1r)}')
            A(f'ds_write_b64 {v(b1a)}, {v(b1r,2)} offset:512')
    A.stamp(5)
    V.reset(mk)
    A('s_mov_b64 exec, s[98:99]')
    A(f'ds_write_b128 {v(cw)}, {v(CS,4)}')
    A('s_mov_b64 exec, -1')
    A('s_waitcnt lgkmcnt(0)\ns_barrier')
    A('s_cmp_eq_u32 s11, 13\ns_cselect_b32 s40, s30, 0\ns_cmp_lg_u32 s40, 0\ns_cbranch_scc1 k1_end')
    A.stamp(6)
    CC = V(32, 4); BB = V(32, 4); rr = V(4, 2)
    A(f'ds_read_b64 {v(rr,2)}, {v(sra)}\nds_read_b64 {v(rr+2,2)}, {v(sra)} offset:512')
    for i in range(6):
        a_ = v(ca + i // 4); o = 32 * (i % 4)
        A(f'ds_read_b128 {v(CC+4*i,4)}, {a_} offset:{o}\nds_read_b128 {v(BB+4*i,4)}, {a_} offset:{512+o}')
    Q = V(8, 2); HO = V(8, 4)
    n = 0
    for t in range(2):
        for gp in range(2):
            ci = t * 2 + gp
            if ci == 1:
                for i in (6, 7):
                    a_ = v(ca + 1); o = 32 * (i % 4)
                    A(f'ds_read_b128 {v(CC+4*i,4)}, {a_} offset:{o}\nds_read_b128 {v(BB+4*i,4)}, {a_} offset:{512+o}')
            A(f's_waitcnt lgkmcnt({[8, 8, 4, 0][ci]})')
            for u_ in range(2):
                u = ACC + (t * 2 + u_) * 16 + 8 * gp; R_ = v(rr + 2 * u_, 2)
                for i in range(4): A(f'v_pk_fma_f32 {v(Q+2*i,2)}, {v(CC+8*ci+2*i,2)}, {R_}, {v(BB+8*ci+2*i,2)} op_sel:[0,1,0] op_sel_hi:[1,1,1] neg_lo:[1,0,0] neg_hi:[1,0,0]')
                for i in range(4): A(f'v_pk_fma_f32 {v(u+2*i,2)}, {v(u+2*i,2)}, {R_}, {v(Q+2*i,2)} op_sel_hi:[1,0,1]')
                for i in range(4): A(f'v_pk_mul_f32 {v(Q+2*i,2)}, {v(u+2*i,2)}, {v(u+2*i,2)}')
                for i in range(4): A(f'v_pk_fma_f32 {v(Q+2*i,2)}, {v(Q+2*i,2)}, {v(k2,2)}, {v(k1,2)} op_sel_hi:[1,0,0]')
                for i in range(4): A(f'v_pk_mul_f32 {v(Q+2*i,2)}, {v(Q+2*i,2)}, {v(u+2*i,2)}')
                for i in range(8): A(f'v_exp_f32 {v(Q+i)}, {v(Q+i)}')
                for i in range(4): A(f'v_pk_add_f32 {v(Q+2*i,2)}, {v(Q+2*i,2)}, {v(one,2)} {BC}')
                for i in range(8): A(f'v_rcp_f32 {v(Q+i)}, {v(Q+i)}')
                for i in range(4): A(f'v_pk_mul_f32 {v(u+2*i,2)}, {v(u+2*i,2)}, {v(Q+2*i,2)}')
                d = HO + 4 * (n & 1); n += 1
                for i in range(4): A(f'v_cvt_pk_bf16_f32 {v(d+i)}, {v(u+2*i)}, {v(u+2*i+1)}')
                A(f'buffer_store_dwordx4 {v(d,4)}, {v(ho)}, s[24:27], s{44+2*t+u_} offen offset:{1024*gp} sc1')
    A.stamp(7)
    A.end(0, 8)
    return max(hi, V.hi)

def gen_k1(A):
    header(A, 'k1_kernel')
    A('s_cmp_ge_u32 s2, 256\ns_cbranch_scc1 k1_end')
    A('s_load_dwordx2 s[6:7], s[0:1], 80\ns_load_dwordx2 s[8:9], s[0:1], 0\ns_load_dwordx4 s[40:43], s[0:1], 8\ns_load_dwordx4 s[44:47], s[0:1], 32\ns_load_dwordx2 s[48:49], s[0:1], 48\ns_load_dwordx2 s[50:51], s[0:1], 72')
    code_prefetch(A)
    A('v_lshrrev_b32 v1, 6, v0')
    A('v_readfirstlane_b32 s3, v1')
    A('s_and_b32 s4, s2, 7\ns_lshr_b32 s5, s2, 3')
    A.stamp(0)
    A('s_cmp_ge_u32 s5, 28\ns_cbranch_scc1 k1_fft')
    A.label('k1_gemm')
    n2 = gen_gemm(A)
    n1 = gen_fft(A)
    A.label('k1_end')
    A('s_endpgm')
    return max(n1, n2)
```

```python
from asmlib import *
import layouts as L
from gen import VA, srd, header, unpack, XB

NST = 9; RING = 6; STB = 24576; KS = 6
K2_LDS = RING * STB
NG = 160

def pk_cmul_conj(A, re, im, c, sn, t):
    A(f'v_pk_mul_f32 {v(t,2)}, {v(re,2)}, {v(sn,2)}')
    A(f'v_pk_mul_f32 {v(re,2)}, {v(re,2)}, {v(c,2)}')
    A(f'v_pk_fma_f32 {v(re,2)}, {v(im,2)}, {v(sn,2)}, {v(re,2)}')
    A(f'v_pk_fma_f32 {v(im,2)}, {v(im,2)}, {v(c,2)}, {v(t,2)} neg_lo:[0,0,1] neg_hi:[0,0,1]')

def gen_fft(A):
    V = VA()
    A.label('k2_fft')
    A(f's_sub_u32 s4, s2, {NG}')
    A('s_cmp_ge_u32 s4, 82\ns_cbranch_scc1 k2_end')
    A('s_bfe_u32 s24, s4, 0x10003\ns_and_b32 s25, s4, 7\ns_mul_i32 s25, s25, 5\ns_lshr_b32 s26, s4, 4\ns_add_u32 s25, s25, s26')
    A('s_and_b32 s26, s4, 1\ns_cmp_ge_u32 s4, 80\ns_cselect_b32 s24, s26, s24\ns_cselect_b32 s25, 40, s25')
    lane, t0, t1, t2, vo, vw = V(), V(), V(), V(), V(), V()
    A(f'v_and_b32 {v(lane)}, 63, v0')
    A(f'v_lshrrev_b32 {v(t0)}, 3, {v(lane)}')
    A(f'v_bfe_u32 {v(t1)}, v0, 4, 3')
    A(f'v_and_b32 {v(t2)}, 7, v0')
    A(f'v_xor_b32 {v(t1)}, {v(t1)}, {v(t2)}')
    A(f'v_lshlrev_b32 {v(t1)}, 4, {v(t1)}')
    A(f'v_mad_u32_u24 {v(vo)}, {v(t0)}, s10, {v(t1)}')
    A(f'v_mul_u32_u24 {v(vw)}, 1284, v0')
    A(f's_lshl_b32 s28, s25, 7')
    A(f's_lshl_b32 s27, s3, 4\ns_add_u32 s27, s27, s24\ns_mul_i32 s27, s27, {L.GP}\ns_add_u32 s27, s27, s28')
    A(f's_mul_i32 s37, s24, 642\ns_lshl_b32 s38, s25, 4\ns_min_u32 s38, s38, 626\ns_add_u32 s37, s37, s38\ns_add_u32 s38, s37, {512*1284}')
    A('s_lshl_b32 s29, s3, 10')
    A('s_waitcnt lgkmcnt(0)')
    srd(A, 12, 6, L.OFF_A, L.SZ_A); srd(A, 16, 44, 0, 2048 * 642); srd(A, 48, 46, 0, 2048 * 642)
    A('s_mov_b32 s42, s27')
    for i in range(4):
        A(f's_add_u32 m0, s29, {8192*i}')
        if i: A(f's_add_u32 s27, s27, {128*L.GP}')
        A(f'buffer_load_dwordx4 {v(vo)}, s[12:15], s27 offen lds')
    WR = 160
    def wload(n):
        b, pl = n >> 1, n & 1
        A(f'buffer_load_dwordx4 {v(WR+8*b+4*pl,4)}, {v(vw)}, s[{16+32*pl}:{19+32*pl}], s{37+b} offen')
    srd(A, 20, 6, L.OFF_P, L.SZ_A)
    j, h = V(), V()
    A(f'v_and_b32 {v(j)}, 31, v0')
    A(f'v_bfe_u32 {v(h)}, v0, 5, 1')
    fj, fu, sa, pa, sb, pb = V(), V(), V(), V(), V(), V()
    A(f'v_cvt_f32_u32 {v(fj)}, {v(j)}')
    A(f'v_bfe_u32 {v(t0)}, v0, 5, 3\nv_lshlrev_b32 {v(t0)}, 2, {v(t0)}')
    A(f'v_cvt_f32_u32 {v(fu)}, {v(t0)}')
    A(f's_cmp_eq_u32 s24, 0\ns_cselect_b32 s30, 0, {fh(1/64)}')
    A('s_cmp_ge_u32 s3, 4\ns_cselect_b32 s31, 0, s30\ns_cselect_b32 s32, s30, 0\ns_cselect_b64 vcc, -1, 0')
    A(f'v_mul_f32 {v(sb)}, {fh(1/32)}, {v(fj)}')
    A(f'v_add_f32 {v(sa)}, s31, {v(sb)}')
    A(f'v_mul_f32 {v(pa)}, {v(sa)}, {v(fu)}')
    A(f'v_fmac_f32 {v(pa)}, s32, {v(fj)}')
    A(f'v_mul_f32 {v(pb)}, {v(sb)}, {v(fu)}')
    FA = V(32, 4); FB = V(32, 4); FT = V(32, 4); TB = V(32, 4)
    X = V(16, 4); Wd = V(16, 4); AC = V(64, 4); tp = V(4, 2); wu = V(4)
    assert Wd == WR, Wd
    CT = 65536
    l16 = V()
    A(f'v_lshlrev_b32 {v(l16)}, 4, {v(lane)}\nv_add_u32 {v(l16)}, {CT}, {v(l16)}')
    for r in range(4):
        an, bn = AC + 20 + r, AC + 40 + r
        if r: A(f'v_fmamk_f32 {v(an)}, {v(sa)}, {fh(float(r))}, {v(pa)}\nv_fmamk_f32 {v(bn)}, {v(sb)}, {fh(float(r))}, {v(pb)}')
        else: an, bn = pa, pb
        A(f'v_cos_f32 {v(AC+24+r)}, {v(an)}\nv_sin_f32 {v(AC+28+r)}, {v(an)}')
        A(f'v_mul_f32 {v(AC+8+r)}, {fh(1/32)}, {v(an)}')
        A(f'v_cos_f32 {v(AC+32+r)}, {v(bn)}\nv_sin_f32 {v(AC+36+r)}, {v(bn)}')
        A(f'v_sin_f32 {v(AC+12+r)}, {v(AC+8+r)}\nv_cos_f32 {v(AC+8+r)}, {v(AC+8+r)}')
        A(f'v_cvt_pk_bf16_f32 {v(AC+r)}, {v(AC+24+r)}, {v(AC+28+r)}')
        A(f'v_cvt_pk_bf16_f32 {v(AC+4+r)}, -{v(AC+28+r)}, {v(AC+24+r)}')
        A(f'v_cvt_pk_bf16_f32 {v(AC+16+r)}, {v(AC+32+r)}, {v(AC+36+r)}')
        A(f'v_cvt_pk_bf16_f32 {v(AC+44+r)}, -{v(AC+36+r)}, {v(AC+32+r)}')
        A(f'v_cndmask_b32 {v(AC+16+r)}, {v(AC+16+r)}, {v(AC+44+r)}, vcc')
    A('s_lshr_b32 s39, s3, 2\ns_mul_i32 s39, s39, 12288\ns_add_u32 s39, s39, s29')
    A(f'v_add_u32 {v(t0)}, s39, {v(l16)}\nv_add_u32 {v(t2)}, s29, {v(l16)}')
    for m in range(4): A(f'ds_write_b128 {v(t0)}, {v(AC+4*m,4)} offset:{4096*m}')
    A(f'ds_write_b128 {v(t2)}, {v(AC+16,4)} offset:32768')
    ra, so = fj, fu
    A(f'v_bfe_u32 {v(t0)}, v0, 1, 3\nv_xor_b32 {v(t0)}, s3, {v(t0)}\nv_lshlrev_b32 {v(t0)}, 4, {v(t0)}')
    A(f'v_lshl_add_u32 {v(ra)}, {v(lane)}, 7, {v(t0)}')
    A(f'v_and_b32 {v(t0)}, 1, v0\nv_lshlrev_b32 {v(t0)}, 2, {v(t0)}\nv_xor_b32 {v(t0)}, s3, {v(t0)}\nv_lshlrev_b32 {v(t0)}, 4, {v(t0)}')
    A(f'v_lshl_add_u32 {v(so)}, {v(j)}, 10, {v(t0)}')
    A(f'v_lshl_add_u32 {v(so)}, {v(h)}, 7, {v(so)}')
    A('s_mov_b32 s41, 0xffff0000')
    A('s_waitcnt lgkmcnt(0)\ns_barrier')
    def tread(part):
        for q in range(4):
            A(f'ds_read_b128 {v(TB+4*q,4)}, {v(l16)} offset:{16384*part+8192+1024*q}')
            A(f'ds_read_b128 {v(TB+16+4*q,4)}, {v(l16)} offset:{16384*part+12288+1024*q}')
    for q in range(8): A(f'ds_read_b128 {v(FA+4*q,4)}, {v(l16)} offset:{1024*q}')
    tread(0)
    for q in range(8): A(f'ds_read_b128 {v(FB+4*q,4)}, {v(l16)} offset:{32768+1024*q}')
    for q in range(8): A(f'ds_read_b128 {v(FT+4*q,4)}, {v(l16)} offset:{16384+1024*q}')
    A.stamp(1)
    wsc = sa
    A(f'v_lshrrev_b32 {v(t0)}, 7, v0\nv_lshlrev_b32 {v(wsc)}, 12, {v(t0)}')
    A(f'v_lshl_add_u32 {v(wsc)}, {v(j)}, 7, {v(wsc)}')
    A(f'v_bfe_u32 {v(t0)}, v0, 5, 2\nv_lshl_add_u32 {v(wsc)}, {v(t0)}, 2, {v(wsc)}')
    A(f'v_bfe_u32 {v(t0)}, v0, 1, 3\nv_lshl_add_u32 {v(wsc)}, {v(t0)}, 4, {v(wsc)}')
    A(f's_cmp_eq_u32 s25, 40\ns_cselect_b32 s46, 112, 0\nv_xor_b32 {v(wsc)}, s46, {v(wsc)}')
    A('s_mov_b32 s46, 0x05040100\ns_mov_b32 s47, 0x07060302')
    wload(0)
    A('s_waitcnt vmcnt(1) lgkmcnt(0)')
    A.stamp(2)
    A('s_barrier')
    A.stamp(3)
    for q in range(4): A(f'ds_read_b128 {v(X+4*q,4)}, {v(ra)} offset:{q*8192}')
    def mm(M, data_is_A, q, o):
        for D, off in ((AC + o, 0), (AC + o + 16, 16)):
            a_, b_ = (v(X+4*q,4), v(M+off+4*q,4)) if data_is_A else (v(M+off+4*q,4), v(X+4*q,4))
            A(f'v_mfma_f32_32x32x16_bf16 {v(D,16)}, {a_}, {b_}, {v(D,16) if q else 0}')
    def twq(o, q):
        K = range(4 * q, 4 * q + 4)
        for k in K: A(f'v_mul_f32 {v(tp+(k&3))}, {v(AC+o+k)}, {v(TB+k)}')
        for k in K: A(f'v_mul_f32 {v(AC+o+k)}, {v(AC+o+k)}, {v(TB+16+k)}')
        for k in K: A(f'v_fmac_f32 {v(tp+(k&3))}, {v(AC+o+16+k)}, {v(TB+16+k)}')
        for k in K: A(f'v_fma_f32 {v(AC+o+16+k)}, {v(AC+o+16+k)}, {v(TB+k)}, -{v(AC+o+k)}')
        for k in K: A(f'v_cvt_pk_bf16_f32 {v(X+k)}, {v(tp+(k&3))}, {v(AC+o+16+k)}')
    for q in range(4):
        A(f's_waitcnt lgkmcnt({3-q})')
        mm(FA, True, q, 0)
    wload(1)
    for q in range(4):
        twq(0, q); mm(FB, False, q, 32)
        if q in (0, 2): wload(2 + q // 2)
    A('s_waitcnt vmcnt(0)')
    for c in range(8):
        if c: A(f'v_xor_b32 {v(TB+16+c)}, {16*c}, {v(wsc)}')
        for b in range(2):
            A(f'v_perm_b32 {v(TB+2*c+b)}, {v(WR+8*b+4+(c>>1))}, {v(WR+8*b+(c>>1))}, s{46+(c&1)}')
        A(f'ds_write2st64_b32 {v(TB+16+c if c else wsc)}, {v(TB+2*c)}, {v(TB+2*c+1)} offset0:128 offset1:192')
    A('s_waitcnt lgkmcnt(0)\ns_barrier')
    for q in range(4): A(f'ds_read_b128 {v(Wd+4*q,4)}, {v(ra)} offset:{32768+q*8192}')
    tread(1)
    A('s_waitcnt lgkmcnt(8)')
    for q in range(4):
        K = range(4 * q, 4 * q + 4)
        for k in K: A(f'v_lshlrev_b32 {v(wu+(k&3))}, 16, {v(Wd+k)}')
        for k in K: A(f'v_and_b32 {v(Wd+k)}, s41, {v(Wd+k)}')
        for k in K: A(f'v_mul_f32 {v(tp+(k&3))}, {v(AC+48+k)}, {v(Wd+k)}')
        for k in K: A(f'v_mul_f32 {v(AC+48+k)}, {v(AC+48+k)}, {v(wu+(k&3))}')
        for k in K: A(f'v_fma_f32 {v(tp+(k&3))}, {v(AC+32+k)}, {v(wu+(k&3))}, -{v(tp+(k&3))}')
        for k in K: A(f'v_fmac_f32 {v(AC+48+k)}, {v(AC+32+k)}, {v(Wd+k)}')
        for k in K: A(f'v_cvt_pk_bf16_f32 {v(X+k)}, {v(tp+(k&3))}, -{v(AC+48+k)}')
        mm(FB, True, q, 0)
    A('s_waitcnt lgkmcnt(0)')
    for q in range(4): twq(0, q); mm(FT, True, q, 32)
    for g in range(1, 4): A(f'v_xor_b32 {v(tp+g)}, {16*g}, {v(so)}')
    for g in range(4):
        for r in range(4): A(f'v_cvt_pk_bf16_f32 {v(Wd+4*g+r)}, {v(AC+32+4*g+r)}, -{v(AC+48+4*g+r)}')
        A(f'ds_write_b128 {v(tp+g if g else so)}, {v(Wd+4*g,4)} offset:{256*g}')
    A(f'v_subrev_u32 {v(t2)}, {CT}, {v(t2)}')
    A('s_waitcnt lgkmcnt(0)')
    A.stamp(4)
    A('s_barrier')
    for i in range(4): A(f'ds_read_b128 {v(AC+4*i,4)}, {v(t2)} offset:{8192*i}')
    for i in range(4):
        A(f's_waitcnt lgkmcnt({3-i})')
        A(f'buffer_store_dwordx4 {v(AC+4*i,4)}, {v(vo)}, s[20:23], s42 offen sc1')
        if i < 3: A(f's_add_u32 s42, s42, {128*L.GP}')
    A.end(1, 5)
    return V.hi

def gen_gemm(A):
    V = VA()
    A('s_lshr_b32 s10, s5, 2')
    A('s_lshl_b32 s24, s4, 2\ns_and_b32 s11, s5, 3\ns_add_u32 s24, s24, s11')
    A('s_lshr_b32 s25, s24, 4\ns_and_b32 s26, s24, 15')
    lane = V(); t0 = V(); t1 = V(); t2 = V()
    A(f'v_and_b32 {v(lane)}, 63, v0')
    A('s_cmp_lt_u32 s3, 4\ns_cbranch_scc1 k2_comp')
    mk0 = V.mark()
    lo = V()
    A(f'v_lshrrev_b32 {v(t1)}, 4, {v(lane)}\nv_lshlrev_b32 {v(t0)}, 2, {v(t1)}\nv_and_b32 {v(t2)}, 15, v0')
    A(f'v_xor_b32 {v(t2)}, {v(t2)}, {v(t0)}')
    A(f'v_mul_u32_u24 {v(lo)}, 1280, {v(t1)}')
    A(f'v_lshl_add_u32 {v(lo)}, {v(t2)}, 4, {v(lo)}')
    A('s_sub_u32 s27, s3, 4')
    A(f's_mul_i32 s28, s25, 36\ns_add_u32 s28, s28, s27\ns_mul_i32 s28, s28, {24*1280}\ns_lshl_b32 s29, s10, 8\ns_add_u32 s28, s28, s29')
    A('s_mul_i32 s29, s27, 6144')
    A('s_waitcnt lgkmcnt(0)')
    srd(A, 12, 8, 0, 1728 * 1280)
    def issue(st):
        slot = st % RING
        for i in range(6):
            A(f's_add_u32 m0, s29, {slot*STB+i*1024}')
            if i or st: A(f's_add_u32 s28, s28, {5120 if i else 96*1280-5*5120}')
            else: A('s_nop 0')
            A(f'buffer_load_dwordx4 {v(lo)}, s[12:15], s28 offen lds')
    issue(0)
    A('s_barrier')
    issue(1)
    issued = 2
    A.stamp(1)
    for st in range(NST):
        A(f's_waitcnt vmcnt({6*(issued-st-1)})')
        A('s_barrier')
        for _ in range(2 if st < 2 else 1):
            if issued < NST and issued - RING + 2 <= st: issue(issued); issued += 1
    A.end(1, 2)
    A.label('k2_comp')
    V.reset(mk0)
    ho = V()
    A(f'v_lshlrev_b32 {v(ho)}, 4, {v(lane)}')
    A('s_lshl_b32 s27, s26, 2\ns_add_u32 s27, s27, s3')
    A('s_mul_i32 s28, s27, 108\ns_mul_i32 s29, s25, 54\ns_add_u32 s28, s28, s29\ns_lshl_b32 s28, s28, 10')
    A('s_waitcnt lgkmcnt(0)')
    srd(A, 12, 6, L.OFF_H, L.SZ_H)
    HW = 18
    HF = V(4 * HW, 4); ACC = V(64, 4); AF = V(32, 4)
    def hload(k):
        if k % 4 == 0 and k: A('s_add_u32 s28, s28, 4096')
        A(f'buffer_load_dwordx4 {v(HF+4*(k%HW),4)}, {v(ho)}, s[12:15], s28 offen offset:{(k%4)*1024}')
    for k in range(6): hload(k)
    A('s_barrier')
    for k in range(6, 12): hload(k)
    srd(A, 16, 6, L.OFF_PART, L.SZ_PART)
    ab = V(12)
    A(f'v_bfe_u32 {v(t0)}, v0, 2, 2')
    A(f'v_bfe_u32 {v(t1)}, v0, 5, 1')
    A(f'v_lshl_add_u32 {v(t2)}, {v(t1)}, 2, {v(t0)}')
    A(f'v_lshlrev_b32 {v(t2)}, 8, {v(t2)}')
    A(f'v_lshl_add_u32 {v(t2)}, {v(t0)}, 6, {v(t2)}')
    A(f'v_bfe_u32 {v(t0)}, v0, 4, 1\nv_lshl_add_u32 {v(t2)}, {v(t0)}, 5, {v(t2)}')
    A(f'v_and_b32 {v(t0)}, 1, v0\nv_lshl_add_u32 {v(t2)}, {v(t0)}, 4, {v(t2)}')
    A(f'v_bfe_u32 {v(t0)}, v0, 1, 1\nv_lshl_add_u32 {v(ab)}, {v(t0)}, 3, {v(t2)}')
    for t in range(1, 4): A(f'v_xor_b32 {v(ab+t)}, {64*t}, {v(ab)}')
    for sp in range(1, 3):
        for t in range(4): A(f'v_add_u32 {v(ab+4*sp+t)}, {2*STB*sp}, {v(ab+t)}')
    so = V()
    A(f'v_bfe_u32 {v(t0)}, v0, 2, 3')
    A(f'v_mul_u32_u24 {v(so)}, 5120, {v(t0)}')
    A(f'v_and_b32 {v(t0)}, 3, v0')
    A(f'v_lshl_add_u32 {v(so)}, {v(t0)}, 4, {v(so)}')
    A(f'v_lshl_add_u32 {v(so)}, {v(t1)}, 6, {v(so)}')
    A(f's_mul_i32 s30, s25, {L.SZ_PART1}\ns_mul_i32 s31, s27, 40960\ns_add_u32 s30, s30, s31\ns_lshl_b32 s31, s10, 10\ns_add_u32 s30, s30, s31')
    def rd(k, t):
        st, q = divmod(k, KS); slot = st % RING
        for e in range(2):
            A(f'ds_read_b64_tr_b16 {v(AF+(k&1)*16+4*t+2*e,2)}, {v(ab+4*(slot//2)+t)} offset:{(slot%2)*STB+q*4096+e*2048}')
    NK = NST * KS
    A.stamp(1)
    A('s_barrier')
    A.stamp(2)
    for t in range(4): rd(0, t)
    hissued = 12
    for k in range(NK):
        if k in (18, 36): A.stamp(3 if k == 18 else 4)
        if k + 1 < NK and (k + 1) % KS == 0: A('s_barrier')
        A(f's_waitcnt vmcnt({hissued - k - 1})')
        for t in range(4):
            A(f's_waitcnt lgkmcnt({6 if k + 1 < NK else 6 - 2 * t})')
            A(f'v_mfma_f32_32x32x16_bf16 {v(ACC+16*t,16)}, {v(AF+(k&1)*16+4*t,4)}, {v(HF+4*(k%HW),4)}, {v(ACC+16*t,16) if k else 0}')
            if k + 1 < NK: rd(k + 1, t)
        for _ in range(2):
            if hissued < NK and hissued <= k + HW: hload(hissued); hissued += 1
    A.stamp(5)
    for t in range(4):
        for gp in range(2):
            d = AF + (t * 2 + gp) * 4
            for i in range(4): A(f'v_cvt_pk_bf16_f32 {v(d+i)}, {v(ACC+16*t+8*gp+2*i)}, {v(ACC+16*t+8*gp+2*i+1)}')
            A(f'buffer_store_dwordx4 {v(d,4)}, {v(so)}, s[16:19], s30 offen offset:{t*256+gp*128} sc1')
    A.stamp(6)
    A.end(1, 7)
    return V.hi

def gen_k2(A):
    header(A, 'k2_kernel')
    A('s_cmp_ge_u32 s2, 256\ns_cbranch_scc1 k2_end')
    A('s_load_dwordx2 s[6:7], s[0:1], 80\ns_load_dwordx2 s[8:9], s[0:1], 48\ns_load_dwordx4 s[44:47], s[0:1], 8')
    A('v_lshrrev_b32 v1, 6, v0')
    A('v_readfirstlane_b32 s3, v1')
    A('s_and_b32 s4, s2, 7\ns_lshr_b32 s5, s2, 3')
    A(f's_mov_b32 s10, {2*L.GP}')
    A.stamp(0)
    A(f's_cmp_ge_u32 s2, {NG}\ns_cbranch_scc1 k2_fft')
    A.label('k2_gemm')
    n2 = gen_gemm(A)
    n1 = gen_fft(A)
    A.label('k2_end')
    A('s_endpgm')
    return max(n1, n2)
```

```python
import numpy as np
from model import bf16
CP = 328
GP = CP * 16
OFF_H = 0;            SZ_H = 64 * 108 * 1024
OFF_A = 8 << 20;      SZ_A = 512 * GP
OFF_WT = 12 << 20;    WTP = 648 * 16; SZ_WT = 256 * WTP + 128
OFF_P = 16 << 20
OFF_PART = 20 << 20;  SZ_PART1 = 512 * 5120; NPART = 2; SZ_PART = NPART * SZ_PART1
OFF_ST = 15 << 20;    SZ_ST = 256 * 128
WS_USED = 32 << 20

def to_u16(x): return (bf16(x).view(np.uint32) >> 16).astype(np.uint16)
def from_u16(u): return (u.astype(np.uint32) << 16).view(np.float32)

def pack_pieces(Z, rowidx):
    out = np.zeros((256, 2, CP, 4, 2), np.uint16)
    for hf in range(2):
        z = Z[hf][rowidx]
        out[:, hf, :321, :, 0] = to_u16(z.real).transpose(0, 2, 1)
        out[:, hf, :321, :, 1] = to_u16(z.imag).transpose(0, 2, 1)
    return out
def unpack_pieces(u, rowidx):
    u = u.reshape(256, 2, CP, 4, 2)
    Z = np.zeros((2, 1024, 321), complex)
    for hf in range(2):
        z = from_u16(u[:, hf, :321, :, 0]).astype(np.float64) + 1j * from_u16(u[:, hf, :321, :, 1])
        Z[hf][rowidx] = z.transpose(0, 2, 1)
    return Z
G = np.arange(256)[:, None]; R4 = np.arange(4)[None]
IDX_A = 32 * (4 * (G >> 5) + R4) + (G & 31)
IDX_P = 4 * G + R4
def pack_wt(wr, wi):
    W = wr.astype(np.float64) + 1j * wi
    p = pack_pieces(np.stack([W[0::2], W[1::2]]), IDX_A)[:, :, :321].reshape(256, 642, 4, 2)
    out = np.zeros((256, 648, 4, 2), np.uint16); out[:, :642] = p
    return out
def h_index():
    st = np.arange(64)[:, None, None, None]; ch = np.arange(108)[None, :, None, None]
    l = np.arange(64)[None, None, :, None]; e = np.arange(8)[None, None, None, :]
    s = 32 * st + (l & 31) + 0 * ch + 0 * e
    f = 16 * ch + 8 * (e >> 2) + 4 * (l >> 5) + (e & 3) + 0 * st
    return s, f
def pack_h(h): s, f = h_index(); return to_u16(h[s, f])
def unpack_h(u):
    s, f = h_index(); h = np.zeros((2048, 1728), np.float32); h[s, f] = from_u16(u.reshape(64, 108, 64, 8)); return h
def pack_part(p):
    return to_u16(p.reshape(512, 4, 80, 8).transpose(0, 2, 1, 3))
def unpack_part(u): return from_u16(u.reshape(512, 80, 4, 8)).transpose(0, 2, 1, 3).reshape(2048, 640)
```

```python
import sys, math
from asmlib import *
import layouts as L

NAME = 'recurrent_scan__spectral_gfnet__dense_activation_gelu__prompt'
XB = 2048 * 640 * 2
LOG2E = 1.4426950408889634

class VA:
    def __init__(self, start=1): self.n = start; self.hi = start
    def __call__(self, c=1, al=None):
        al = al or (1 if c == 1 else 2)
        self.n = (self.n + al - 1) // al * al
        r = self.n; self.n += c; self.hi = max(self.hi, self.n); return r
    def mark(self): return self.n
    def reset(self, m): self.n = m

def srd(A, d, base, off, size):
    if off:
        A(f's_add_u32 {s(d)}, {s(base)}, {off}')
        A(f's_addc_u32 {s(d+1)}, {s(base+1)}, 0')
    else:
        A(f's_mov_b32 {s(d)}, {s(base)}')
        A(f's_mov_b32 {s(d+1)}, {s(base+1)}')
    A(f's_mov_b32 {s(d+2)}, {size}')
    A(f's_mov_b32 {s(d+3)}, 0x00020000')

def header(A, name):
    A(f'.globl {name}\n.p2align 8\n.type {name},@function')
    A.label(name)

def desc(name, nv, ns=102):
    acc = (nv + 3) // 4 * 4
    return f'''.amdhsa_kernel {name}
  .amdhsa_next_free_vgpr {nv}
  .amdhsa_next_free_sgpr {ns}
  .amdhsa_accum_offset {acc}
  .amdhsa_group_segment_fixed_size 0
  .amdhsa_kernarg_size 88
  .amdhsa_user_sgpr_count 2
  .amdhsa_user_sgpr_kernarg_segment_ptr 1
  .amdhsa_system_sgpr_workgroup_id_x 1
  .amdhsa_float_denorm_mode_32 3
.end_amdhsa_kernel
'''

def code_prefetch(A):
    A('s_getpc_b64 s[96:97]')
    A.label('cpf')
    A('s_lshr_b32 s90, s2, 3\ns_lshl_b32 s90, s90, 13')
    A('s_cmp_ge_u32 s90, text_end-text_begin\ns_cbranch_scc1 cpf_done')
    A('v_lshl_add_u32 v250, v0, 4, s90')
    A('v_min_u32 v250, text_end-text_begin-16, v250')
    A('s_sub_u32 s96, s96, cpf-text_begin\ns_subb_u32 s97, s97, 0')
    A('v_mov_b32 v251, s97')
    A('v_add_co_u32 v250, vcc, s96, v250\nv_addc_co_u32 v251, vcc, 0, v251, vcc')
    A('global_load_dwordx4 v[252:255], v[250:251], off')
    A.label('cpf_done')

def unpack(A, dlo, dhi, src):
    A(f'v_lshlrev_b32 {v(dlo)}, 16, {v(src)}')
    A(f'v_and_b32 {v(dhi)}, 0xffff0000, {v(src)}')

def cmul(A, dr, di, ar, ai, br, bi, t):
    A(f'v_mul_f32 {v(t)}, {v(ai)}, {v(bi)}')
    A(f'v_mul_f32 {v(di)}, {v(ai)}, {v(br)}')
    A(f'v_fmac_f32 {v(di)}, {v(ar)}, {v(bi)}')
    A(f'v_fma_f32 {v(dr)}, {v(ar)}, {v(br)}, -{v(t)}')

K3_LDS = 20480 + 10240
def gen_k3(A):
    header(A, 'k3_kernel')
    V = VA()
    A('s_cmp_ge_u32 s2, 256\ns_cbranch_scc1 k3_end')
    A('s_load_dwordx2 s[4:5], s[0:1], 0\ns_load_dwordx4 s[8:11], s[0:1], 56\ns_load_dwordx2 s[6:7], s[0:1], 80')
    lane, g, j, tp, t0, t1 = V(), V(), V(), V(), V(), V()
    A(f'v_lshrrev_b32 {v(t0)}, 6, v0')
    A(f'v_and_b32 {v(lane)}, 63, v0')
    A(f'v_readfirstlane_b32 s3, {v(t0)}')
    A(f'v_lshrrev_b32 {v(g)}, 4, {v(lane)}')
    A(f'v_and_b32 {v(j)}, 15, v0')
    A('s_cmp_ge_u32 s3, 5\ns_cselect_b32 s32, 1, 0')
    A('s_mul_i32 s33, s32, 320')
    A(f'v_subrev_u32 {v(tp)}, s33, v0')
    A('s_waitcnt lgkmcnt(0)')
    A.stamp(0)
    srd(A, 12, 4, 0, XB); srd(A, 16, 10, 0, XB); srd(A, 20, 6, L.OFF_P, L.SZ_A); srd(A, 24, 6, L.OFF_PART, L.SZ_PART); srd(A, 28, 8, 0, 1280)
    pd = V(8, 4)
    A('s_cmp_ge_u32 s3, 8\ns_cbranch_scc1 k3_noP')
    a0, a1 = V(), V()
    A(f'v_min_u32 {v(t0)}, 10, {v(j)}')
    A(f'v_lshlrev_b32 {v(t0)}, 4, {v(t0)}')
    A(f'v_mul_u32_u24 {v(t1)}, 1280, {v(g)}')
    A(f'v_add_u32 {v(a0)}, {v(t0)}, {v(t1)}')
    A(f'v_sub_u32 {v(a1)}, 4160, {v(a0)}')
    A('s_lshr_b32 s34, s3, 2\ns_lshl_b32 s35, s2, 1\ns_add_u32 s34, s34, s35')
    A(f's_mul_i32 s34, s34, {L.GP}\ns_and_b32 s35, s3, 3\ns_lshl_b32 s35, s35, 2\ns_add_u32 s34, s34, s35')
    for c in range(4): A(f'buffer_load_dword {v(pd+c)}, {v(a0)}, s[20:23], s34 offen offset:{c*320}')
    for c in range(4): A(f'buffer_load_dword {v(pd+4+c)}, {v(a1)}, s[20:23], s34 offen offset:{(3-c)*320}')
    A.label('k3_noP')
    off16 = V(); pt = V(8, 4); bb = V(4, 4); xx = V(4, 4)
    A(f'v_lshlrev_b32 {v(off16)}, 4, {v(tp)}')
    A('s_lshl_b32 s36, s32, 8\ns_add_u32 s36, s36, s2\ns_mul_i32 s36, s36, 5120')
    for ks in range(2):
        if ks: A(f's_add_u32 s{37+ks}, s36, {ks*L.SZ_PART1}')
    for ks in range(2):
        A(f'buffer_load_dwordx4 {v(pt+4*ks,4)}, {v(off16)}, s[24:27], s{37+ks if ks else 36} offen')
    A(f'v_lshrrev_b32 {v(t0)}, 2, {v(tp)}')
    A(f'v_lshlrev_b32 {v(t0)}, 4, {v(t0)}')
    A(f'buffer_load_dwordx4 {v(bb,4)}, {v(t0)}, s[28:31], 0 offen')
    A(f'buffer_load_dwordx4 {v(xx,4)}, {v(off16)}, s[12:15], s36 offen')
    gaddr = V()
    A(f'v_and_b32 {v(t1)}, 3, {v(tp)}')
    A(f'v_mul_u32_u24 {v(t1)}, 1280, {v(t1)}')
    A(f'v_add_u32 {v(gaddr)}, {v(t0)}, {v(t1)}')
    A('s_mul_i32 s40, s32, 5120\ns_add_u32 s40, s40, 20480')
    A(f'v_add_u32 {v(gaddr)}, s40, {v(gaddr)}')
    A('s_cmp_ge_u32 s3, 8\ns_cbranch_scc1 k3_g')
    mk = V.mark()
    fj, fg4, th, st, sgn = V(), V(), V(), V(), V()
    cs = V(4); sn = V(4); cq = V(4); sq_ = V(4)
    B1 = V(32, 4)
    def b1(T, q, part): return B1 + ((T * 2 + q) * 2 + part) * 4
    A(f'v_cvt_f32_u32 {v(fj)}, {v(j)}')
    A(f'v_lshlrev_b32 {v(t0)}, 2, {v(g)}')
    A(f'v_cvt_f32_u32 {v(fg4)}, {v(t0)}')
    A(f'v_mul_f32 {v(st)}, {fh(1/32)}, {v(fj)}')
    A(f'v_mul_f32 {v(th)}, {v(st)}, {v(fg4)}')
    A(f'v_lshlrev_b32 {v(sgn)}, 31, {v(j)}')
    for c in range(4):
        A(f'v_cos_f32 {v(cs+c)}, {v(th)}\nv_sin_f32 {v(sn+c)}, {v(th)}')
        if c < 3: A(f'v_add_f32 {v(th)}, {v(th)}, {v(st)}')
    for c in range(4):
        A(f'v_xor_b32 {v(cq+c)}, {v(sgn)}, {v(cs+c)}\nv_xor_b32 {v(sq_+c)}, {v(sgn)}, {v(sn+c)}')
    for T in range(2):
        for c in range(4):
            ng = (T == 1 and (c & 1))
            P_ = '-' if ng else ''; N_ = '' if ng else '-'
            A(f'v_cvt_pk_bf16_f32 {v(b1(T,0,0)+c)}, {P_}{v(cs+c)}, {N_}{v(sn+c)}')
            A(f'v_cvt_pk_bf16_f32 {v(b1(T,0,1)+c)}, {P_}{v(sn+c)}, {P_}{v(cs+c)}')
            A(f'v_cvt_pk_bf16_f32 {v(b1(T,1,0)+c)}, {P_}{v(cq+c)}, {P_}{v(sq_+c)}')
            A(f'v_cvt_pk_bf16_f32 {v(b1(T,1,1)+c)}, {P_}{v(sq_+c)}, {N_}{v(cq+c)}')
    w = V(4)
    for r in range(4):
        A(f'v_add_u32 {v(t0)}, {r}, {v(g)}' if False else f'v_lshl_add_u32 {v(t0)}, {v(g)}, 2, {r}')
        A(f'v_cmp_gt_u32 vcc, 10, {v(t0)}')
        A(f'v_cndmask_b32 {v(w+r)}, 0, 2.0, vcc')
        if r == 0:
            A(f'v_cmp_eq_u32 vcc, 0, {v(t0)}')
            A(f'v_cndmask_b32 {v(w+r)}, {v(w+r)}, 1.0, vcc')
        if r == 2:
            A(f'v_cmp_eq_u32 vcc, 10, {v(t0)}')
            A(f'v_cndmask_b32 {v(w+r)}, {v(w+r)}, 1.0, vcc')
    twc = V(8); tws = V(8); B2 = V(8, 4)
    fjT = V()
    for T in range(2):
        if T: A(f'v_add_f32 {v(fjT)}, {fh(16.0)}, {v(fj)}')
        src = fjT if T else fj
        A(f'v_mul_f32 {v(st)}, {fh(1/640)}, {v(src)}')
        A(f'v_mul_f32 {v(th)}, {v(st)}, {v(fg4)}')
        for r in range(4):
            A(f'v_cos_f32 {v(twc+4*T+r)}, {v(th)}\nv_sin_f32 {v(tws+4*T+r)}, {v(th)}')
            if r < 3: A(f'v_add_f32 {v(th)}, {v(th)}, {v(st)}')
        A(f'v_mul_f32 {v(st)}, {fh(1/20)}, {v(src)}')
        A(f'v_mul_f32 {v(th)}, {v(st)}, {v(fg4)}')
        for r in range(4):
            A(f'v_cos_f32 {v(cs+r)}, {v(th)}\nv_sin_f32 {v(sn+r)}, {v(th)}')
            if r < 3: A(f'v_add_f32 {v(th)}, {v(th)}, {v(st)}')
        for r in range(4):
            A(f'v_mul_f32 {v(twc+4*T+r)}, {v(twc+4*T+r)}, {v(w+r)}\nv_mul_f32 {v(tws+4*T+r)}, {v(tws+4*T+r)}, {v(w+r)}')
            A(f'v_cvt_pk_bf16_f32 {v(B2+4*T+r)}, {v(cs+r)}, -{v(sn+r)}')
    pw = V()
    A(f'v_lshlrev_b32 {v(pw)}, 7, {v(j)}')
    A(f'v_lshl_add_u32 {v(pw)}, {v(g)}, 4, {v(pw)}')
    A('s_mul_i32 s41, s3, 2560')
    A(f'v_add_u32 {v(pw)}, s41, {v(pw)}')
    D = V(16, 4)
    A.stamp(1)
    A('s_waitcnt vmcnt(4)')
    A.stamp(2)
    for q in range(2):
        for T in range(2):
            for part in range(2):
                d = D + (T * 2 + part) * 4
                A(f'v_mfma_f32_16x16x32_bf16 {v(d,4)}, {v(pd+4*q,4)}, {v(b1(T,q,part),4)}, {v(d,4) if q else 0}')
    U = V(8, 4)
    for T in range(2):
        for r in range(4):
            re = D + T * 8 + r; im = re + 4
            cmul(A, re, im, re, im, twc + 4 * T + r, tws + 4 * T + r, t0 if r & 1 else t1)
            A(f'v_cvt_pk_bf16_f32 {v(U+4*T+r)}, {v(re)}, {v(im)}')
    E = V(16, 4)
    for T in range(2):
        for T1 in range(2):
            A(f'v_mfma_f32_16x16x32_bf16 {v(E+(T*2+T1)*4,4)}, {v(U+4*T,4)}, {v(B2+4*T1,4)}, 0')
    A(f'v_cmp_gt_u32 vcc, 4, {v(j)}')
    for T in range(2): A(f'ds_write_b128 {v(pw)}, {v(E+(T*2)*4,4)} offset:{64*T}')
    A('s_and_saveexec_b64 s[42:43], vcc')
    for T in range(2): A(f'ds_write_b128 {v(pw)}, {v(E+(T*2+1)*4,4)} offset:{2048+64*T}')
    A('s_mov_b64 exec, s[42:43]')
    V.reset(mk)
    A.label('k3_g')
    y = V(8, 2); tt = V(8, 2); gp = V(4, 4)
    A.stamp(3)
    A('s_waitcnt vmcnt(1)')
    A.stamp(4)
    for i in range(4):
        unpack(A, y + 2 * i, y + 2 * i + 1, bb + i)
    for ks in range(2):
        for i in range(4):
            unpack(A, tt + 2 * i, tt + 2 * i + 1, pt + 4 * ks + i)
            A(f'v_pk_add_f32 {v(y+2*i,2)}, {v(y+2*i,2)}, {v(tt+2*i,2)}')
    for i in range(8): A(f'v_mul_f32 {v(tt+i)}, {fh(-LOG2E)}, {v(y+i)}')
    for i in range(8): A(f'v_exp_f32 {v(tt+i)}, {v(tt+i)}')
    SC = 2048.0 * 640.0
    A(f's_mov_b32 s44, {fh(SC)}')
    for i in range(8): A(f'v_fma_f32 {v(tt+i)}, {v(tt+i)}, s44, s44')
    for i in range(8): A(f'v_rcp_f32 {v(tt+i)}, {v(tt+i)}')
    for i in range(4): A(f'v_pk_mul_f32 {v(y+2*i,2)}, {v(y+2*i,2)}, {v(tt+2*i,2)}')
    for i in range(4): A(f'v_cvt_pk_bf16_f32 {v(gp+i)}, {v(y+2*i)}, {v(y+2*i+1)}')
    A(f'ds_write_b128 {v(gaddr)}, {v(gp,4)}')
    ra = V(); rg = V()
    A(f'v_lshlrev_b32 {v(ra)}, 5, {v(tp)}')
    A(f'v_add_u32 {v(rg)}, s40, {v(off16)}')
    A(f's_cmp_eq_u32 s32, 0\ns_cselect_b32 s45, {fh(1.0)}, {fh(-1.0)}')
    A.stamp(5)
    A('s_waitcnt lgkmcnt(0)\ns_barrier')
    A.stamp(6)
    pp = V(8, 4); qq = V(8, 4)
    A(f'ds_read_b128 {v(pp,4)}, {v(ra)}\nds_read_b128 {v(pp+4,4)}, {v(ra)} offset:16')
    A(f'ds_read_b128 {v(qq,4)}, {v(ra)} offset:10240\nds_read_b128 {v(qq+4,4)}, {v(ra)} offset:10256')
    A(f'ds_read_b128 {v(gp,4)}, {v(rg)}')
    A('s_waitcnt vmcnt(0)')
    for i in range(4): unpack(A, y + 2 * i, y + 2 * i + 1, xx + i)
    A('s_waitcnt lgkmcnt(0)')
    for i in range(8): A(f'v_fmac_f32 {v(pp+i)}, s45, {v(qq+i)}')
    for i in range(4): unpack(A, tt + 2 * i, tt + 2 * i + 1, gp + i)
    for i in range(8): A(f'v_fmac_f32 {v(y+i)}, {v(pp+i)}, {v(tt+i)}')
    for i in range(4): A(f'v_cvt_pk_bf16_f32 {v(gp+i)}, {v(y+2*i)}, {v(y+2*i+1)}')
    A(f'buffer_store_dwordx4 {v(gp,4)}, {v(off16)}, s[16:19], s36 offen')
    A.stamp(7)
    A.end(2, 8)
    A.label('k3_end')
    A('s_endpgm')
    return V.hi

def main(out, kernels):
    A = Asm()
    if 'prof' in kernels: A.prof = True
    launches = []; descs = []
    for k in kernels:
        if k == 'k1':
            from gen_k1 import gen_k1, K1_LDS
            nv = gen_k1(A); assert nv <= 250; nv = 256; launches.append(f'; @launch kernel=k1_kernel grid=(256,1,1) block=(512,1,1) lds={K1_LDS}'); descs.append(desc('k1_kernel', nv))
        if k == 'k2':
            from gen_k2 import gen_k2, K2_LDS
            nv = gen_k2(A); launches.append(f'; @launch kernel=k2_kernel grid=(256,1,1) block=(512,1,1) lds={K2_LDS}'); descs.append(desc('k2_kernel', nv))
        if k == 'k3':
            nv = gen_k3(A); launches.append(f'; @launch kernel=k3_kernel grid=(256,1,1) block=(640,1,1) lds={K3_LDS}'); descs.append(desc('k3_kernel', nv))
        if k != 'prof': print(k, 'vgprs', nv, file=sys.stderr)
    body = A.finalize()
    txt = '; generated by dev/gen.py (own generator)\n' + '\n'.join(launches) + '\n'
    txt += '.amdgcn_target "amdgcn-amd-amdhsa--gfx950"\n.text\n.p2align 8\ntext_begin:\n' + body + '.p2align 8\ntext_end:\n'
    txt += '.section .rodata,"a"\n' + ''.join('.p2align 6\n' + d for d in descs)
    open(out, 'w').write(txt)

if __name__ == '__main__':
    main(sys.argv[1], sys.argv[2:])
```

```python
import sys, math
from asmlib import *
import layouts as L

NAME = 'recurrent_scan__spectral_gfnet__dense_activation_gelu__prompt'
XB = 2048 * 640 * 2
LOG2E = 1.4426950408889634

class VA:
    def __init__(self, start=1): self.n = start; self.hi = start
    def __call__(self, c=1, al=None):
        al = al or (1 if c == 1 else 2)
        self.n = (self.n + al - 1) // al * al
        r = self.n; self.n += c; self.hi = max(self.hi, self.n); return r
    def mark(self): return self.n
    def reset(self, m): self.n = m

def srd(A, d, base, off, size):
    if off:
        A(f's_add_u32 {s(d)}, {s(base)}, {off}')
        A(f's_addc_u32 {s(d+1)}, {s(base+1)}, 0')
    else:
        A(f's_mov_b32 {s(d)}, {s(base)}')
        A(f's_mov_b32 {s(d+1)}, {s(base+1)}')
    A(f's_mov_b32 {s(d+2)}, {size}')
    A(f's_mov_b32 {s(d+3)}, 0x00020000')

def header(A, name):
    A(f'.globl {name}\n.p2align 8\n.type {name},@function')
    A.label(name)

def desc(name, nv, ns=102):
    acc = (nv + 3) // 4 * 4
    return f'''.amdhsa_kernel {name}
  .amdhsa_next_free_vgpr {nv}
  .amdhsa_next_free_sgpr {ns}
  .amdhsa_accum_offset {acc}
  .amdhsa_group_segment_fixed_size 0
  .amdhsa_kernarg_size 88
  .amdhsa_user_sgpr_count 2
  .amdhsa_user_sgpr_kernarg_segment_ptr 1
  .amdhsa_system_sgpr_workgroup_id_x 1
  .amdhsa_float_denorm_mode_32 3
.end_amdhsa_kernel
'''

def code_prefetch(A):
    A('s_getpc_b64 s[96:97]')
    A.label('cpf')
    A('s_lshr_b32 s90, s2, 3\ns_lshl_b32 s90, s90, 13')
    A('s_cmp_ge_u32 s90, text_end-text_begin\ns_cbranch_scc1 cpf_done')
    A('v_lshl_add_u32 v250, v0, 4, s90')
    A('v_min_u32 v250, text_end-text_begin-16, v250')
    A('s_sub_u32 s96, s96, cpf-text_begin\ns_subb_u32 s97, s97, 0')
    A('v_mov_b32 v251, s97')
    A('v_add_co_u32 v250, vcc, s96, v250\nv_addc_co_u32 v251, vcc, 0, v251, vcc')
    A('global_load_dwordx4 v[252:255], v[250:251], off')
    A.label('cpf_done')

def unpack(A, dlo, dhi, src):
    A(f'v_lshlrev_b32 {v(dlo)}, 16, {v(src)}')
    A(f'v_and_b32 {v(dhi)}, 0xffff0000, {v(src)}')

def cmul(A, dr, di, ar, ai, br, bi, t):
    A(f'v_mul_f32 {v(t)}, {v(ai)}, {v(bi)}')
    A(f'v_mul_f32 {v(di)}, {v(ai)}, {v(br)}')
    A(f'v_fmac_f32 {v(di)}, {v(ar)}, {v(bi)}')
    A(f'v_fma_f32 {v(dr)}, {v(ar)}, {v(br)}, -{v(t)}')

K3_LDS = 20480 + 10240
def gen_k3(A):
    header(A, 'k3_kernel')
    V = VA()
    A('s_cmp_ge_u32 s2, 256\ns_cbranch_scc1 k3_end')
    A('s_load_dwordx2 s[4:5], s[0:1], 0\ns_load_dwordx4 s[8:11], s[0:1], 56\ns_load_dwordx2 s[6:7], s[0:1], 80')
    lane, g, j, tp, t0, t1 = V(), V(), V(), V(), V(), V()
    A(f'v_lshrrev_b32 {v(t0)}, 6, v0')
    A(f'v_and_b32 {v(lane)}, 63, v0')
    A(f'v_readfirstlane_b32 s3, {v(t0)}')
    A(f'v_lshrrev_b32 {v(g)}, 4, {v(lane)}')
    A(f'v_and_b32 {v(j)}, 15, v0')
    A('s_cmp_ge_u32 s3, 5\ns_cselect_b32 s32, 1, 0')
    A('s_mul_i32 s33, s32, 320')
    A(f'v_subrev_u32 {v(tp)}, s33, v0')
    A('s_waitcnt lgkmcnt(0)')
    A.stamp(0)
    srd(A, 12, 4, 0, XB); srd(A, 16, 10, 0, XB); srd(A, 20, 6, L.OFF_P, L.SZ_A); srd(A, 24, 6, L.OFF_PART, L.SZ_PART); srd(A, 28, 8, 0, 1280)
    pd = V(8, 4)
    A('s_cmp_ge_u32 s3, 8\ns_cbranch_scc1 k3_noP')
    a0, a1 = V(), V()
    A(f'v_min_u32 {v(t0)}, 10, {v(j)}')
    A(f'v_lshlrev_b32 {v(t0)}, 4, {v(t0)}')
    A(f'v_mul_u32_u24 {v(t1)}, 1280, {v(g)}')
    A(f'v_add_u32 {v(a0)}, {v(t0)}, {v(t1)}')
    A(f'v_sub_u32 {v(a1)}, 4160, {v(a0)}')
    A('s_lshr_b32 s34, s3, 2\ns_lshl_b32 s35, s2, 1\ns_add_u32 s34, s34, s35')
    A(f's_mul_i32 s34, s34, {L.GP}\ns_and_b32 s35, s3, 3\ns_lshl_b32 s35, s35, 2\ns_add_u32 s34, s34, s35')
    for c in range(4): A(f'buffer_load_dword {v(pd+c)}, {v(a0)}, s[20:23], s34 offen offset:{c*320}')
    for c in range(4): A(f'buffer_load_dword {v(pd+4+c)}, {v(a1)}, s[20:23], s34 offen offset:{(3-c)*320}')
    A.label('k3_noP')
    off16 = V(); pt = V(8, 4); bb = V(4, 4); xx = V(4, 4)
    A(f'v_lshlrev_b32 {v(off16)}, 4, {v(tp)}')
    A('s_lshl_b32 s36, s32, 8\ns_add_u32 s36, s36, s2\ns_mul_i32 s36, s36, 5120')
    for ks in range(2):
        if ks: A(f's_add_u32 s{37+ks}, s36, {ks*L.SZ_PART1}')
    for ks in range(2):
        A(f'buffer_load_dwordx4 {v(pt+4*ks,4)}, {v(off16)}, s[24:27], s{37+ks if ks else 36} offen')
    A(f'v_lshrrev_b32 {v(t0)}, 2, {v(tp)}')
    A(f'v_lshlrev_b32 {v(t0)}, 4, {v(t0)}')
    A(f'buffer_load_dwordx4 {v(bb,4)}, {v(t0)}, s[28:31], 0 offen')
    A(f'buffer_load_dwordx4 {v(xx,4)}, {v(off16)}, s[12:15], s36 offen')
    gaddr = V()
    A(f'v_and_b32 {v(t1)}, 3, {v(tp)}')
    A(f'v_mul_u32_u24 {v(t1)}, 1280, {v(t1)}')
    A(f'v_add_u32 {v(gaddr)}, {v(t0)}, {v(t1)}')
    A('s_mul_i32 s40, s32, 5120\ns_add_u32 s40, s40, 20480')
    A(f'v_add_u32 {v(gaddr)}, s40, {v(gaddr)}')
    A('s_cmp_ge_u32 s3, 8\ns_cbranch_scc1 k3_g')
    mk = V.mark()
    fj, fg4, th, st, sgn = V(), V(), V(), V(), V()
    cs = V(4); sn = V(4); cq = V(4); sq_ = V(4)
    B1 = V(32, 4)
    def b1(T, q, part): return B1 + ((T * 2 + q) * 2 + part) * 4
    A(f'v_cvt_f32_u32 {v(fj)}, {v(j)}')
    A(f'v_lshlrev_b32 {v(t0)}, 2, {v(g)}')
    A(f'v_cvt_f32_u32 {v(fg4)}, {v(t0)}')
    A(f'v_mul_f32 {v(st)}, {fh(1/32)}, {v(fj)}')
    A(f'v_mul_f32 {v(th)}, {v(st)}, {v(fg4)}')
    A(f'v_lshlrev_b32 {v(sgn)}, 31, {v(j)}')
    for c in range(4):
        A(f'v_cos_f32 {v(cs+c)}, {v(th)}\nv_sin_f32 {v(sn+c)}, {v(th)}')
        if c < 3: A(f'v_add_f32 {v(th)}, {v(th)}, {v(st)}')
    for c in range(4):
        A(f'v_xor_b32 {v(cq+c)}, {v(sgn)}, {v(cs+c)}\nv_xor_b32 {v(sq_+c)}, {v(sgn)}, {v(sn+c)}')
    for T in range(2):
        for c in range(4):
            ng = (T == 1 and (c & 1))
            P_ = '-' if ng else ''; N_ = '' if ng else '-'
            A(f'v_cvt_pk_bf16_f32 {v(b1(T,0,0)+c)}, {P_}{v(cs+c)}, {N_}{v(sn+c)}')
            A(f'v_cvt_pk_bf16_f32 {v(b1(T,0,1)+c)}, {P_}{v(sn+c)}, {P_}{v(cs+c)}')
            A(f'v_cvt_pk_bf16_f32 {v(b1(T,1,0)+c)}, {P_}{v(cq+c)}, {P_}{v(sq_+c)}')
            A(f'v_cvt_pk_bf16_f32 {v(b1(T,1,1)+c)}, {P_}{v(sq_+c)}, {N_}{v(cq+c)}')
    w = V(4)
    for r in range(4):
        A(f'v_add_u32 {v(t0)}, {r}, {v(g)}' if False else f'v_lshl_add_u32 {v(t0)}, {v(g)}, 2, {r}')
        A(f'v_cmp_gt_u32 vcc, 10, {v(t0)}')
        A(f'v_cndmask_b32 {v(w+r)}, 0, 2.0, vcc')
        if r == 0:
            A(f'v_cmp_eq_u32 vcc, 0, {v(t0)}')
            A(f'v_cndmask_b32 {v(w+r)}, {v(w+r)}, 1.0, vcc')
        if r == 2:
            A(f'v_cmp_eq_u32 vcc, 10, {v(t0)}')
            A(f'v_cndmask_b32 {v(w+r)}, {v(w+r)}, 1.0, vcc')
    twc = V(8); tws = V(8); B2 = V(8, 4)
    fjT = V()
    for T in range(2):
        if T: A(f'v_add_f32 {v(fjT)}, {fh(16.0)}, {v(fj)}')
        src = fjT if T else fj
        A(f'v_mul_f32 {v(st)}, {fh(1/640)}, {v(src)}')
        A(f'v_mul_f32 {v(th)}, {v(st)}, {v(fg4)}')
        for r in range(4):
            A(f'v_cos_f32 {v(twc+4*T+r)}, {v(th)}\nv_sin_f32 {v(tws+4*T+r)}, {v(th)}')
            if r < 3: A(f'v_add_f32 {v(th)}, {v(th)}, {v(st)}')
        A(f'v_mul_f32 {v(st)}, {fh(1/20)}, {v(src)}')
        A(f'v_mul_f32 {v(th)}, {v(st)}, {v(fg4)}')
        for r in range(4):
            A(f'v_cos_f32 {v(cs+r)}, {v(th)}\nv_sin_f32 {v(sn+r)}, {v(th)}')
            if r < 3: A(f'v_add_f32 {v(th)}, {v(th)}, {v(st)}')
        for r in range(4):
            A(f'v_mul_f32 {v(twc+4*T+r)}, {v(twc+4*T+r)}, {v(w+r)}\nv_mul_f32 {v(tws+4*T+r)}, {v(tws+4*T+r)}, {v(w+r)}')
            A(f'v_cvt_pk_bf16_f32 {v(B2+4*T+r)}, {v(cs+r)}, -{v(sn+r)}')
    pw = V()
    A(f'v_lshlrev_b32 {v(pw)}, 7, {v(j)}')
    A(f'v_lshl_add_u32 {v(pw)}, {v(g)}, 4, {v(pw)}')
    A('s_mul_i32 s41, s3, 2560')
    A(f'v_add_u32 {v(pw)}, s41, {v(pw)}')
    D = V(16, 4)
    A.stamp(1)
    A('s_waitcnt vmcnt(4)')
    A.stamp(2)
    for q in range(2):
        for T in range(2):
            for part in range(2):
                d = D + (T * 2 + part) * 4
                A(f'v_mfma_f32_16x16x32_bf16 {v(d,4)}, {v(pd+4*q,4)}, {v(b1(T,q,part),4)}, {v(d,4) if q else 0}')
    U = V(8, 4)
    for T in range(2):
        for r in range(4):
            re = D + T * 8 + r; im = re + 4
            cmul(A, re, im, re, im, twc + 4 * T + r, tws + 4 * T + r, t0 if r & 1 else t1)
            A(f'v_cvt_pk_bf16_f32 {v(U+4*T+r)}, {v(re)}, {v(im)}')
    E = V(16, 4)
    for T in range(2):
        for T1 in range(2):
            A(f'v_mfma_f32_16x16x32_bf16 {v(E+(T*2+T1)*4,4)}, {v(U+4*T,4)}, {v(B2+4*T1,4)}, 0')
    A(f'v_cmp_gt_u32 vcc, 4, {v(j)}')
    for T in range(2): A(f'ds_write_b128 {v(pw)}, {v(E+(T*2)*4,4)} offset:{64*T}')
    A('s_and_saveexec_b64 s[42:43], vcc')
    for T in range(2): A(f'ds_write_b128 {v(pw)}, {v(E+(T*2+1)*4,4)} offset:{2048+64*T}')
    A('s_mov_b64 exec, s[42:43]')
    V.reset(mk)
    A.label('k3_g')
    y = V(8, 2); tt = V(8, 2); gp = V(4, 4)
    A.stamp(3)
    A('s_waitcnt vmcnt(1)')
    A.stamp(4)
    for i in range(4):
        unpack(A, y + 2 * i, y + 2 * i + 1, bb + i)
    for ks in range(2):
        for i in range(4):
            unpack(A, tt + 2 * i, tt + 2 * i + 1, pt + 4 * ks + i)
            A(f'v_pk_add_f32 {v(y+2*i,2)}, {v(y+2*i,2)}, {v(tt+2*i,2)}')
    for i in range(8): A(f'v_mul_f32 {v(tt+i)}, {fh(-LOG2E)}, {v(y+i)}')
    for i in range(8): A(f'v_exp_f32 {v(tt+i)}, {v(tt+i)}')
    SC = 2048.0 * 640.0
    A(f's_mov_b32 s44, {fh(SC)}')
    for i in range(8): A(f'v_fma_f32 {v(tt+i)}, {v(tt+i)}, s44, s44')
    for i in range(8): A(f'v_rcp_f32 {v(tt+i)}, {v(tt+i)}')
    for i in range(4): A(f'v_pk_mul_f32 {v(y+2*i,2)}, {v(y+2*i,2)}, {v(tt+2*i,2)}')
    for i in range(4): A(f'v_cvt_pk_bf16_f32 {v(gp+i)}, {v(y+2*i)}, {v(y+2*i+1)}')
    A(f'ds_write_b128 {v(gaddr)}, {v(gp,4)}')
    ra = V(); rg = V()
    A(f'v_lshlrev_b32 {v(ra)}, 5, {v(tp)}')
    A(f'v_add_u32 {v(rg)}, s40, {v(off16)}')
    A(f's_cmp_eq_u32 s32, 0\ns_cselect_b32 s45, {fh(1.0)}, {fh(-1.0)}')
    A.stamp(5)
    A('s_waitcnt lgkmcnt(0)\ns_barrier')
    A.stamp(6)
    pp = V(8, 4); qq = V(8, 4)
    A(f'ds_read_b128 {v(pp,4)}, {v(ra)}\nds_read_b128 {v(pp+4,4)}, {v(ra)} offset:16')
    A(f'ds_read_b128 {v(qq,4)}, {v(ra)} offset:10240\nds_read_b128 {v(qq+4,4)}, {v(ra)} offset:10256')
    A(f'ds_read_b128 {v(gp,4)}, {v(rg)}')
    A('s_waitcnt vmcnt(0)')
    for i in range(4): unpack(A, y + 2 * i, y + 2 * i + 1, xx + i)
    A('s_waitcnt lgkmcnt(0)')
    for i in range(8): A(f'v_fmac_f32 {v(pp+i)}, s45, {v(qq+i)}')
    for i in range(4): unpack(A, tt + 2 * i, tt + 2 * i + 1, gp + i)
    for i in range(8): A(f'v_fmac_f32 {v(y+i)}, {v(pp+i)}, {v(tt+i)}')
    for i in range(4): A(f'v_cvt_pk_bf16_f32 {v(gp+i)}, {v(y+2*i)}, {v(y+2*i+1)}')
    A(f'buffer_store_dwordx4 {v(gp,4)}, {v(off16)}, s[16:19], s36 offen')
    A.stamp(7)
    A.end(2, 8)
    A.label('k3_end')
    A('s_endpgm')
    return V.hi

def gen_summ(A):
    header(A, 'summ_kernel')
    A('s_cmp_ge_u32 s2, 1\ns_cbranch_scc1 summ_end')
    A('s_load_dwordx4 s[4:7], s[0:1], 72\ns_waitcnt lgkmcnt(0)')
    srd(A, 8, 6, 40 << 20, 1 << 24); srd(A, 12, 4, 0, 256)
    A('v_lshlrev_b32 v1, 10, v0\nv_mov_b32 v9, 0')
    for k, (lim, e0, e1, tot) in enumerate(((224, 8, 5, 256), (160, 7, 5, 242), (256, 8, 8, 256))):
        A(f'v_cmp_gt_u32 vcc, {lim}, v0\nv_mov_b32 v2, {4*e1}\nv_mov_b32 v3, {4*e0}\nv_cndmask_b32 v2, v2, v3, vcc\nv_add_u32 v2, v2, v1')
        A(f's_mov_b32 s16, {k*4096*64}')
        A('buffer_load_dword v4, v1, s[8:11], s16 offen\nbuffer_load_dword v5, v2, s[8:11], s16 offen\ns_waitcnt vmcnt(0)')
        A('v_not_b32 v4, v4')
        A(f'v_cmp_gt_u32 vcc, {tot}, v0\ns_and_saveexec_b64 s[18:19], vcc')
        A(f'buffer_atomic_umax v4, v9, s[12:15], 0 offen offset:{8*k}\nbuffer_atomic_umax v5, v9, s[12:15], 0 offen offset:{8*k+4}')
        A('s_mov_b64 exec, s[18:19]\ns_waitcnt vmcnt(0)')
    A.label('summ_end')
    A('s_endpgm')
    return 16

def main(out, kernels):
    A = Asm()
    if 'prof' in kernels: A.prof = True
    launches = []; descs = []
    for k in kernels:
        if k == 'k1':
            from gen_k1 import gen_k1, K1_LDS
            nv = gen_k1(A); assert nv <= 250; nv = 256; launches.append(f'; @launch kernel=k1_kernel grid=(256,1,1) block=(512,1,1) lds={K1_LDS}'); descs.append(desc('k1_kernel', nv))
        if k == 'k2':
            from gen_k2 import gen_k2, K2_LDS
            nv = gen_k2(A); launches.append(f'; @launch kernel=k2_kernel grid=(256,1,1) block=(512,1,1) lds={K2_LDS}'); descs.append(desc('k2_kernel', nv))
        if k == 'k3':
            nv = gen_k3(A); launches.append(f'; @launch kernel=k3_kernel grid=(256,1,1) block=(640,1,1) lds={K3_LDS}'); descs.append(desc('k3_kernel', nv))
        if k == 'summ':
            nv = gen_summ(A); launches.append('; @launch kernel=summ_kernel grid=(1,1,1) block=(256,1,1) lds=0'); descs.append(desc('summ_kernel', nv))
        if k != 'prof': print(k, 'vgprs', nv, file=sys.stderr)
    body = A.finalize()
    txt = '; generated by dev/gen.py (own generator)\n' + '\n'.join(launches) + '\n'
    txt += '.amdgcn_target "amdgcn-amd-amdhsa--gfx950"\n.text\n.p2align 8\ntext_begin:\n' + body + '.p2align 8\ntext_end:\n'
    txt += '.section .rodata,"a"\n' + ''.join('.p2align 6\n' + d for d in descs)
    open(out, 'w').write(txt)

if __name__ == '__main__':
    main(sys.argv[1], sys.argv[2:])
```

```python
import re, struct

def v(n, c=1): return f"v{n}" if c == 1 else f"v[{n}:{n+c-1}]"
def s(n, c=1): return f"s{n}" if c == 1 else f"s[{n}:{n+c-1}]"
def a(n, c=1): return f"a{n}" if c == 1 else f"a[{n}:{n+c-1}]"
def f2u(x): return struct.unpack('<I', struct.pack('<f', x))[0]
def fh(x): return f"0x{f2u(x):08x}"

_reg = re.compile(r'^(-|\|)?(abs\()?([vas])(\d+|\[(\d+):(\d+)\])\)?\|?$')
def regs(op):
    op = op.strip()
    if op in ('vcc', 'exec', 'm0', 'scc'): return {(op, 0)}
    if op in ('vcc_lo', 'vcc_hi'): return {('vcc', 0)}
    if op in ('exec_lo', 'exec_hi'): return {('exec', 0)}
    m = _reg.match(op)
    if not m: return set()
    k = m.group(3)
    if m.group(5) is not None: return {(k, i) for i in range(int(m.group(5)), int(m.group(6)) + 1)}
    return {(k, int(m.group(4)))}

TRANS = ('v_exp_f32', 'v_log_f32', 'v_rcp_f32', 'v_rsq_f32', 'v_sqrt_f32', 'v_sin_f32', 'v_cos_f32', 'v_rcp_iflag_f32')

class Ins:
    def __init__(self, text):
        self.text = text
        t = text.split(';')[0].strip()
        self.label = t[:-1] if t.endswith(':') else None
        self.directive = t.startswith('.') and not self.label
        self.empty = (t == '')
        self.op = ''
        self.w = set(); self.r = set()
        self.kind = 'none'
        if self.label or self.directive or self.empty: return
        parts = t.split(None, 1)
        op = parts[0]; self.op = op
        rest = parts[1] if len(parts) > 1 else ''
        ops = []; depth = 0; cur = ''
        for ch in rest:
            if ch in '[(': depth += 1
            if ch in '])': depth -= 1
            if ch == ',' and depth == 0: ops.append(cur.strip()); cur = ''
            else: cur += ch
        if cur.strip(): ops.append(cur.strip())
        mods = ''
        if ops:
            lp = ops[-1].split(None, 1)
            ops[-1] = lp[0]; mods = lp[1] if len(lp) > 1 else ''
        self.ops = ops; self.mods = mods
        R = [regs(o) for o in ops]
        base = re.sub(r'_(e32|e64|dpp|sdwa)$', '', op)
        self.base = base
        self.passes = 0; self.dpp = False; self.wide_store = set(); self.A = self.B = self.C = set()
        if op.startswith('v_mfma'):
            self.kind = 'mfma'
            self.passes = 8 if '32x32x16' in op else 4 if '16x16x32' in op else 2 if '4x4x4' in op else None
            assert self.passes, op
            self.w = R[0]; self.A = R[1]; self.B = R[2]; self.C = R[3]; self.r = R[1] | R[2] | R[3]
        elif op.startswith('v_'):
            self.kind = 'valu'
            nd = 1
            if base in ('v_add_co_u32', 'v_sub_co_u32', 'v_addc_co_u32', 'v_subb_co_u32', 'v_mad_u64_u32', 'v_div_scale_f32'): nd = 2
            if base == 'v_nop': nd = 0
            for x in R[:nd]: self.w |= x
            for x in R[nd:]: self.r |= x
            if base in ('v_fmac_f32', 'v_dot2c_f32_bf16', 'v_pk_fmac_f16', 'v_writelane_b32'): self.r |= R[0]
            if 'swap' in base: self.w |= R[1]; self.r |= R[0]
            if op.endswith('_dpp') or 'row_' in mods or 'quad_perm' in mods: self.dpp = True; self.r |= R[0]
            if base.startswith('v_cmpx'): self.w |= {('exec', 0)}
        elif op.startswith('buffer_') or op.startswith('global_') or op.startswith('flat_'):
            self.kind = 'vmem'
            lds = (' lds' in ' ' + mods) or '_lds_' in op
            self.lds = lds
            if 'store' in op or 'atomic' in op:
                for x in R: self.r |= x
                if op.endswith('x4') or op.endswith('x3'):
                    self.wide_store = R[0] if op.startswith('buffer_') else R[1]
                if 'atomic' in op and 'sc0' in mods and op.startswith('buffer_'): self.w |= R[0]
            elif op in ('buffer_inv', 'buffer_wbl2'):
                pass
            elif lds:
                for x in R: self.r |= x
                self.r |= {('m0', 0)}
            else:
                self.w = R[0]
                for x in R[1:]: self.r |= x
        elif op.startswith('ds_'):
            self.kind = 'ds'
            if op.startswith('ds_read') or 'permute' in op or 'swizzle' in op or '_rtn' in op:
                self.w = R[0]
                for x in R[1:]: self.r |= x
            else:
                for x in R: self.r |= x
        elif op.startswith('s_'):
            self.kind = 'salu'
            if op.startswith(('s_cmp', 's_cbranch', 's_branch', 's_waitcnt', 's_barrier', 's_nop', 's_endpgm', 's_sleep', 's_setprio', 's_bitcmp')):
                for x in R: self.r |= x
            else:
                if R: self.w = R[0]
                for x in R[1:]: self.r |= x
                if 'saveexec' in op: self.w |= {('exec', 0)}
        else:
            raise ValueError('unknown instruction ' + text)
    def states(self):
        if self.label or self.directive or self.empty: return 0
        if self.op == 's_nop': return int(self.ops[0], 0) + 1
        return 1

def vg(x): return {r for r in x if r[0] in 'va'}
def sg(x): return {r for r in x if r[0] in ('s', 'vcc')}

def need(p, c):
    n = 0
    if p.kind == 'valu':
        pw = vg(p.w)
        if pw:
            if c.kind == 'mfma' and pw & c.r: n = max(n, 2)
            if c.kind == 'valu':
                if c.dpp and pw & c.r: n = max(n, 2)
                if 'permlane' in c.base and pw & c.r: n = max(n, 2)
                if c.base in ('v_readlane_b32', 'v_readfirstlane_b32') and pw & c.r: n = max(n, 1)
            if p.base in TRANS and pw & c.r and not (c.kind == 'valu' and c.base in TRANS): n = max(n, 1)
            if p.base.startswith('v_dot'):
                if c.kind == 'valu' and c.base == p.base:
                    srcab = set()
                    for o in c.ops[1:3]: srcab |= regs(o)
                    if pw & srcab: n = max(n, 3)
                elif pw & (c.r | c.w): n = max(n, 3)
            if p.op.endswith('_sdwa') and c.kind in ('valu', 'mfma') and pw & (c.r | c.w): n = max(n, 1)
        ps = sg(p.w)
        if ps:
            if c.kind == 'valu' and ps & c.r:
                n = max(n, 4 if c.base in ('v_readlane_b32', 'v_writelane_b32') else 2)
            if c.kind == 'vmem' and ps & c.r: n = max(n, 5)
            if c.kind == 'salu' and ps & c.r: n = max(n, 2)
            if c.kind == 'salu' and c.op.startswith('s_cbranch_vcc') and ('vcc', 0) in ps: n = max(n, 5)
        if ('exec', 0) in p.w and c.kind in ('valu', 'mfma'): n = max(n, 5)
    elif p.kind == 'mfma':
        P = p.passes
        if c.kind == 'mfma':
            if p.w & c.C:
                if not (p.w == c.C and c.passes == P): n = max(n, P + 2)
                elif P == 2: n = max(n, 2)
            if p.w & (c.A | c.B): n = max(n, P + 4)
            if p.w & c.w and not (p.w == c.w and c.passes == P): n = max(n, P + 2)
        elif c.kind in ('valu', 'vmem', 'ds'):
            if p.w & (c.r | c.w): n = max(n, P + 4)
            if vg(p.C) & c.w: n = max(n, P - 1)
    elif p.kind == 'salu':
        if ('m0', 0) in p.w and c.kind == 'vmem' and ('m0', 0) in c.r: n = max(n, 1)
    elif p.kind == 'vmem':
        if p.wide_store & c.w: n = max(n, 2 if c.kind in ('valu', 'mfma') else 1)
    return n

WINDOW = 14

class Asm:
    def __init__(self): self.items = []
    def __call__(self, text):
        for line in text.split('\n'):
            line = line.strip()
            if line: self.items.append(Ins(line))
    def label(self, name): self.items.append(Ins(name + ':'))
    def comment(self, t): self.items.append(Ins('; ' + t))
    prof = False
    OFF_PROF = 40 << 20
    def stamp(self, i):
        if not self.prof: return
        self(f's_memrealtime s[{70+2*i}:{71+2*i}]')
        self('s_waitcnt lgkmcnt(0)')
    def flush(self, kid, nst):
        if not self.prof: return
        self.stamp(nst)
        self(f's_add_u32 s88, s6, {self.OFF_PROF}\ns_addc_u32 s89, s7, 0\ns_mov_b32 s90, 0x1000000\ns_mov_b32 s91, 0x00020000')
        self(f's_lshl_b32 s94, s2, 4\ns_add_u32 s94, s94, s3\ns_add_u32 s94, s94, {kid*4096}\ns_lshl_b32 s94, s94, 6')
        self('v_mov_b32 v250, 0')
        for i in range(nst + 1):
            self(f'v_mov_b32 v251, s{70+2*i}')
            self(f'buffer_store_dword v251, v250, s[88:91], s94 offen offset:{4*i}')

    def _deficit(self, hist, seq):
        worst = 0; off = 0
        for c in seq:
            if off > WINDOW: break
            if c.states() == 0: continue
            for p, d in hist:
                k = need(p, c) - (d + off)
                worst = max(worst, k)
            if c.op in ('s_branch', 's_endpgm'): break
            off += c.states()
        return worst

    def finalize(self):
        items = self.items
        labels = {it.label: i for i, it in enumerate(items) if it.label}
        out = []
        hist = []
        def push(it):
            nonlocal hist
            st = it.states()
            out.append(it)
            if st:
                hist = [(p, d + st) for p, d in hist if d + st <= WINDOW]
                hist.append((it, 0))
        def nops(k):
            while k > 0:
                n = min(k, 16); push(Ins(f's_nop {n-1}')); k -= n
        for i, it in enumerate(items):
            if it.states() == 0:
                out.append(it); continue
            nops(self._deficit(hist, [it]))
            if it.op.startswith('s_cbranch') or it.op == 's_branch':
                tgt = labels[it.ops[0]]
                h2 = [(p, d + 1) for p, d in hist]
                nops(self._deficit(h2, items[tgt:tgt + 40]))
            push(it)
            if it.op in ('s_branch', 's_endpgm'): hist = []
        return '\n'.join(('' if (it.label or it.directive) else '    ') + it.text for it in out) + '\n'
```

```python
import math
from asmlib import *
import layouts as L
from gen import VA, srd, header, unpack, XB, LOG2E, code_prefetch, ldE, mkE, put_flag, poll, NAME
from gen_k2 import pk_cmul_conj, gather

STAT = 147456
K1_LDS = STAT + 4096
import os
STATS = os.environ.get('STATS', 'B')
PREFETCH_W2 = True
SCHED = lambda k: 2 if k < 8 else 1
BC = 'op_sel_hi:[1,0]'
def rnd_bf16(A, d, src):
    A(f'v_cvt_pk_bf16_f32 {v(d)}, {v(src)}, {v(src)}')
    A(f'v_and_b32 {v(d)}, 0xffff0000, {v(d)}')
def rstd(A, d, var):
    A(f'v_max_f32 {v(d)}, 0, {v(var)}')
    rnd_bf16(A, d, d)
    A(f'v_add_f32 {v(d)}, {fh(1e-5)}, {v(d)}')
    rnd_bf16(A, d, d)
    A(f'v_sqrt_f32 {v(d)}, {v(d)}')
    rnd_bf16(A, d, d)
    A(f'v_rcp_f32 {v(d)}, {v(d)}')
def allred16(A, x):
    for n in (8, 4, 2, 1):
        A(f'v_add_f32_dpp {v(x)}, {v(x)}, {v(x)} row_ror:{n} row_mask:0xf bank_mask:0xf')

def gen_fft(A):
    V = VA()
    A.label('k1_fft')
    A('s_sub_u32 s4, s2, 224')
    A('s_waitcnt lgkmcnt(0)')
    ldE(A)
    srd(A, 12, 8, 0, XB)
    srd(A, 24, 6, L.OFF_A, L.SZ_A)
    A('s_lshl_b32 s32, s4, 3\ns_add_u32 s32, s32, s3')
    A('s_lshr_b32 s33, s32, 5\ns_lshl_b32 s33, s33, 7\ns_and_b32 s34, s32, 31\ns_add_u32 s33, s33, s34')
    A(f's_mul_i32 s34, s33, 1280\ns_add_u32 s35, s34, {1024*1280}')
    lane, g, j, t0, t1, t2 = V(), V(), V(), V(), V(), V()
    A(f'v_and_b32 {v(lane)}, 63, v0')
    A(f'v_lshrrev_b32 {v(g)}, 4, {v(lane)}')
    A(f'v_and_b32 {v(j)}, 15, v0')
    A(f'v_mul_u32_u24 {v(t0)}, {32*1280}, {v(g)}')
    A(f'v_lshl_add_u32 {v(t0)}, {v(j)}, 4, {v(t0)}')
    XP = V(40, 4)
    for b in range(2):
        for i in range(5): A(f'buffer_load_dwordx4 {v(XP+20*b+4*i,4)}, {v(t0)}, s[12:15], s{34+b} offen offset:{256*i}')
    C1 = V(4, 4); S1 = V(4, 4); TC = V(8, 2); TS = V(8, 2); M = V(32, 4)
    wa, r1, r2, o0, o1, o1z = V(), V(), V(), V(), V(), V()
    mk = V.mark()
    fj, fg4, th, st, sgn = V(), V(), V(), V(), V()
    cs = V(8); sn = V(8)
    def m2(T2, T, part): return M + ((T2 * 2 + T) * 2 + part) * 4
    A(f'v_cvt_f32_u32 {v(fj)}, {v(j)}')
    A(f'v_lshlrev_b32 {v(t2)}, 2, {v(g)}')
    A(f'v_cvt_f32_u32 {v(fg4)}, {v(t2)}')
    def angles(scale, list_u, base_g, dc, ds):
        A(f'v_mul_f32 {v(st)}, {fh(scale)}, {v(fj)}')
        if base_g: A(f'v_mul_f32 {v(th)}, {v(st)}, {v(fg4)}')
        for n, u in enumerate(list_u):
            if base_g:
                if u: A(f'v_fmamk_f32 {v(ds+n)}, {v(st)}, {fh(float(u))}, {v(th)}'); an = ds + n
                else: an = th
            else: A(f'v_mul_f32 {v(ds+n)}, {fh(float(u))}, {v(st)}'); an = ds + n
            A(f'v_cos_f32 {v(dc+n)}, {v(an)}\nv_sin_f32 {v(ds+n)}, {v(an)}')
    angles(1 / 20, [0, 1, 2, 3], True, cs, sn)
    angles(1 / 20, [16, 17, 18, 19], False, cs + 4, sn + 4)
    A(f'v_cmp_eq_u32 vcc, 0, {v(g)}')
    for i in range(4):
        A(f'v_cvt_pk_bf16_f32 {v(C1+i)}, {v(cs+2*i)}, {v(cs+2*i+1)}')
        A(f'v_cvt_pk_bf16_f32 {v(S1+i)}, -{v(sn+2*i)}, -{v(sn+2*i+1)}')
    for i in (2, 3):
        A(f'v_cndmask_b32 {v(C1+i)}, 0, {v(C1+i)}, vcc\nv_cndmask_b32 {v(S1+i)}, 0, {v(S1+i)}, vcc')
    angles(1 / 640, [0, 1, 2, 3, 16, 17, 18, 19], True, TC, TS)
    angles(1 / 32, [0, 1, 2, 3], True, cs, sn)
    A(f'v_lshlrev_b32 {v(sgn)}, 31, {v(j)}')
    for c in range(4): A(f'v_xor_b32 {v(cs+4+c)}, {v(sgn)}, {v(cs+c)}\nv_xor_b32 {v(sn+4+c)}, {v(sgn)}, {v(sn+c)}')
    for T2 in range(2):
        for T in range(2):
            for c in range(4):
                ng = (T2 == 1 and (c & 1)); P_ = '-' if ng else ''; N_ = '' if ng else '-'
                A(f'v_cvt_pk_bf16_f32 {v(m2(T2,T,0)+c)}, {P_}{v(cs+4*T+c)}, {P_}{v(sn+4*T+c)}')
                A(f'v_cvt_pk_bf16_f32 {v(m2(T2,T,1)+c)}, {N_}{v(sn+4*T+c)}, {P_}{v(cs+4*T+c)}')
    A('s_mul_i32 s37, s3, 10240')
    A(f'v_mul_u32_u24 {v(wa)}, 1280, {v(g)}')
    A(f'v_lshl_add_u32 {v(o0)}, {v(j)}, 4, {v(wa)}')
    A(f'v_add_u32 {v(wa)}, s37, {v(o0)}')
    A(f'v_bfe_u32 {v(t0)}, v0, 2, 2')
    A(f'v_and_b32 {v(t1)}, 3, v0')
    A(f'v_lshlrev_b32 {v(t1)}, 3, {v(t1)}')
    A(f'v_lshl_add_u32 {v(t1)}, {v(t0)}, 6, {v(t1)}')
    A(f'v_add_u32 {v(t1)}, s37, {v(t1)}')
    A(f'v_lshl_add_u32 {v(r1)}, {v(g)}, 8, {v(t1)}')
    A(f'v_add_u32 {v(r2)}, 1024, {v(t1)}')
    A(f'v_sub_u32 {v(o1)}, 4160, {v(o0)}')
    A(f'v_mov_b32 {v(t2)}, 0x40000000')
    A(f'v_cmp_gt_u32 vcc, 11, {v(j)}')
    A(f'v_cndmask_b32 {v(o0)}, {v(t2)}, {v(o0)}, vcc')
    A(f'v_subrev_u32 {v(t0)}, 1, {v(j)}')
    A(f'v_cmp_eq_u32 s[38:39], 0, {v(lane)}')
    A(f'v_cmp_gt_u32 vcc, 9, {v(t0)}')
    A(f'v_cndmask_b32 {v(o1z)}, {v(t2)}, {v(o1)}, s[38:39]')
    A(f'v_cndmask_b32 {v(o1z)}, {v(o1z)}, {v(o1)}, vcc')
    A(f'v_cndmask_b32 {v(o1)}, {v(t2)}, {v(o1)}, vcc')
    V.reset(mk)
    U = V(80, 4); rs = V(4, 4); sm = V(4, 2); mb = V(4, 2); dl = V(2)
    A.stamp(1)
    sq = V(4, 2); a2 = V(4, 2)
    A('s_setprio 2')
    for b in range(2):
        A(f's_waitcnt vmcnt({5*(1-b)})')
        if b == 0: A.stamp(2)
        u = U + 40 * b; acc = sm + 2 * b; qa = sq + 2 * b
        for i in range(20): unpack(A, u + 2 * i, u + 2 * i + 1, XP + 20 * b + i)
        A(f'v_pk_add_f32 {v(acc,2)}, {v(u,2)}, {v(u+2,2)}')
        A(f'v_pk_mul_f32 {v(qa,2)}, {v(u,2)}, {v(u,2)}')
        A(f'v_pk_add_f32 {v(a2,2)}, {v(u+4,2)}, {v(u+6,2)}')
        A(f'v_pk_mul_f32 {v(a2+2,2)}, {v(u+2,2)}, {v(u+2,2)}')
        for i in range(2, 20, 2):
            if i >= 4: A(f'v_pk_add_f32 {v(acc,2)}, {v(acc,2)}, {v(u+2*i,2)}')
            A(f'v_pk_fma_f32 {v(qa,2)}, {v(u+2*i,2)}, {v(u+2*i,2)}, {v(qa,2)}')
            if i >= 4: A(f'v_pk_add_f32 {v(a2,2)}, {v(a2,2)}, {v(u+2*i+2,2)}')
            A(f'v_pk_fma_f32 {v(a2+2,2)}, {v(u+2*i+2,2)}, {v(u+2*i+2,2)}, {v(a2+2,2)}')
        A(f'v_pk_add_f32 {v(acc,2)}, {v(acc,2)}, {v(a2,2)}')
        A(f'v_pk_add_f32 {v(qa,2)}, {v(qa,2)}, {v(a2+2,2)}')
        A(f'v_add_f32 {v(acc)}, {v(acc)}, {v(acc+1)}\nv_add_f32 {v(qa)}, {v(qa)}, {v(qa+1)}')
    for n in (8, 4, 2, 1):
        for x in (sm, sq, sm + 2, sq + 2): A(f'v_add_f32_dpp {v(x)}, {v(x)}, {v(x)} row_ror:{n} row_mask:0xf bank_mask:0xf')
    for b in range(2):
        A(f'v_mul_f32 {v(sm+2*b)}, {fh(1/640)}, {v(sm+2*b)}\nv_mul_f32 {v(sq+2*b)}, {fh(1/640)}, {v(sq+2*b)}')
        A(f'v_fma_f32 {v(sq+2*b)}, -{v(sm+2*b)}, {v(sm+2*b)}, {v(sq+2*b)}')
        rnd_bf16(A, mb + 2 * b, sm + 2 * b)
    for b in range(2): rstd(A, rs + 2 * b, sq + 2 * b)
    for b in range(2): A(f'v_mul_f32 {v(rs+2*b+1)}, {v(rs+2*b)}, {v(mb+2*b)}')
    srd(A, 16, 6, L.OFF_ST, L.SZ_ST); srd(A, 20, 50, 0, 256)
    A(f'v_lshlrev_b32 {v(dl)}, 4, {v(j)}\nv_lshl_add_u32 {v(dl)}, {v(g)}, 5, {v(dl)}')
    A('s_lshl_b32 s54, s32, 7')
    A('s_mov_b32 exec_lo, 0x00030003\ns_mov_b32 exec_hi, 0x00030003')
    A(f'buffer_store_dwordx4 {v(rs,4)}, {v(dl)}, s[16:19], s54 offen sc1')
    A('s_mov_b64 exec, -1')
    def signal():
        A(f's_lshr_b32 s54, s32, 5\ns_lshl_b32 s54, s54, 5\nv_mov_b32 {v(t0)}, 0\nv_mov_b32 {v(t1)}, 1')
        A('s_waitcnt vmcnt(0)\ns_barrier')
        A('s_cmp_lg_u32 s3, 0\ns_cbranch_scc1 k1_nosig')
        A('s_mov_b64 exec, 1')
        A(f'buffer_atomic_add {v(t1)}, {v(t0)}, s[20:23], s54 offen sc1')
        A('s_mov_b64 exec, -1')
        A.label('k1_nosig')
        A.stamp(3)
    A('s_setprio 0')
    for i in range(20):
        a_, b_ = U + 2 * i, U + 40 + 2 * i
        t = sm + 2 * (i & 1)
        A(f'v_pk_fma_f32 {v(t,2)}, {v(a_,2)}, {v(rs,2)}, {v(rs,2)} op_sel:[0,0,1] op_sel_hi:[1,0,1] neg_lo:[0,0,1] neg_hi:[0,0,1]')
        A(f'v_pk_fma_f32 {v(b_,2)}, {v(b_,2)}, {v(rs+2,2)}, {v(rs+2,2)} op_sel:[0,0,1] op_sel_hi:[1,0,1] neg_lo:[0,0,1] neg_hi:[0,0,1]')
        A(f'v_pk_add_f32 {v(a_,2)}, {v(t,2)}, {v(b_,2)}')
        A(f'v_pk_add_f32 {v(b_,2)}, {v(t,2)}, {v(b_,2)} neg_lo:[0,1] neg_hi:[0,1]')
        if i == SIGI: signal()
        A(f'v_cvt_pk_bf16_f32 {v(XP+i)}, {v(a_)}, {v(a_+1)}')
        A(f'v_cvt_pk_bf16_f32 {v(XP+20+i)}, {v(b_)}, {v(b_+1)}')
        if i % 4 == 3:
            for b in range(2): A(f'ds_write_b128 {v(wa)}, {v(XP+20*b+i-3,4)} offset:{5120*b+256*(i//4)}')
    V.reset(mk)
    DA = V(32, 4); D1 = XP; tp = V(4, 2); PO = V(32, 4); lo16 = V(); lr = V()
    OB = 81920
    A(f's_mul_i32 s44, s32, {2*L.GP}')
    A(f's_mul_i32 s46, s3, 6144\ns_add_u32 s46, s46, {OB}')
    A(f'v_lshlrev_b32 {v(lo16)}, 4, {v(lane)}')
    A(f'v_add_u32 {v(lr)}, s46, {v(lo16)}')
    A(f'v_mov_b32 {v(t0)}, 5152')
    for o in (o0, o1, o1z):
        A(f'v_min_u32 {v(o)}, {v(o)}, {v(t0)}\nv_add_u32 {v(o)}, s46, {v(o)}')
    A('s_mov_b32 s45, 0')
    A('s_waitcnt lgkmcnt(0)')
    A.label('k1_fft_loop')
    def d1(row, T, part): return D1 + (((row & 1) * 2 + T) * 2 + part) * 4
    for row in range(4):
        for T in range(2):
            A(f'ds_read_b64_tr_b16 {v(DA+(row*2+T)*4,2)}, {v(r1)} offset:{row*1280+T*32}')
            A(f'ds_read_b64_tr_b16 {v(DA+(row*2+T)*4+2,2)}, {v(r2)} offset:{row*1280+T*32}')
    A(f'v_add_u32 {v(r1)}, 5120, {v(r1)}\nv_add_u32 {v(r2)}, 5120, {v(r2)}')
    def s1(row):
        A(f's_waitcnt lgkmcnt({12-4*row})')
        for T in range(2):
            A(f'v_mfma_f32_16x16x32_bf16 {v(d1(row,T,0),4)}, {v(DA+(row*2+T)*4,4)}, {v(C1,4)}, 0')
            A(f'v_mfma_f32_16x16x32_bf16 {v(d1(row,T,1),4)}, {v(DA+(row*2+T)*4,4)}, {v(S1,4)}, 0')
    def tw(row):
        for T in range(2):
            for k in (0, 2):
                pk_cmul_conj(A, d1(row,T,0) + k, d1(row,T,1) + k, TC + 4 * T + k, TS + 4 * T + k, tp + k)
            for k in range(4): A(f'v_cvt_pk_bf16_f32 {v(DA+(row*2+T)*4+k)}, {v(d1(row,T,0)+k)}, {v(d1(row,T,1)+k)}')
    def s2(row):
        for T in range(2):
            for T2 in range(2):
                for part in range(2):
                    d = d1(row, T2, part)
                    A(f'v_mfma_f32_16x16x32_bf16 {v(d,4)}, {v(m2(T2,T,part),4)}, {v(DA+(row*2+T)*4,4)}, {v(d,4) if T else 0}')
    def po(row):
        for T2 in range(2):
            for r in range(4):
                A(f'v_cvt_pk_bf16_f32 {v(PO+(T2*4+r)*4+row)}, {v(d1(row,T2,0)+r)}, {"-" if T2 else ""}{v(d1(row,T2,1)+r)}')
    s1(0); s1(1); tw(0); s2(0); tw(1); s2(1); po(0); s1(2); po(1); s1(3); tw(2); s2(2); tw(3); s2(3); po(2); po(3)
    for r in range(4): A(f'ds_write_b128 {v(o0)}, {v(PO+r*4,4)} offset:{r*320}')
    for r in range(4): A(f'ds_write_b128 {v(o1 if r else o1z)}, {v(PO+(4+r)*4,4)} offset:{(3-r)*320}')
    A('s_waitcnt lgkmcnt(0)')
    for i in range(6): A(f'ds_read_b128 {v(PO+4*i,4)}, {v(lr)} offset:{1024*i}')
    A('s_add_u32 s47, s44, 4096')
    for i in range(6):
        A(f's_waitcnt lgkmcnt({5-i})')
        if i == 5: A('s_mov_b64 exec, 15')
        A(f'buffer_store_dwordx4 {v(PO+4*i,4)}, {v(lo16)}, s[24:27], s{44 if i < 4 else 47} offen offset:{1024*(i%4)} sc1')
    A('s_mov_b64 exec, -1')
    A(f's_add_u32 s44, s44, {L.GP}\ns_add_u32 s45, s45, 1\ns_cmp_lt_u32 s45, 2\ns_cbranch_scc1 k1_fft_loop')
    A.stamp(4)
    A(f's_lshl_b32 s58, s4, 3\ns_add_u32 s58, s58, {L.FL_A}')
    A('s_waitcnt vmcnt(0)')
    A.flush(0, 5)
    A('s_branch a_done')
    return V.hi

SIGI = 10
NST = 10; RING = 4; WK = 5; POLL = int(os.environ.get('POLL', 4))
WST = 131072
def gen_gemm(A):
    V = VA()
    A('s_and_b32 s10, s4, 3\ns_lshl_b32 s10, s10, 2\ns_and_b32 s11, s5, 3\ns_add_u32 s10, s10, s11')
    A('s_lshr_b32 s11, s4, 2\ns_mul_i32 s11, s11, 7\ns_lshr_b32 s28, s5, 2\ns_add_u32 s11, s11, s28')
    lane, t0, t1, t2 = V(), V(), V(), V()
    A(f'v_and_b32 {v(lane)}, 63, v0')
    A('s_cmp_lt_u32 s3, 4\ns_cbranch_scc1 k1_comp')
    base_mark = V.mark()
    A('s_sub_u32 s29, s3, 4')
    A('s_lshl_b32 s31, s11, 8')
    xo = V(2); wo = V()
    A(f'v_lshrrev_b32 {v(t0)}, 3, {v(lane)}')
    A(f'v_lshrrev_b32 {v(t1)}, 4, {v(lane)}')
    A(f'v_and_b32 {v(t2)}, 7, v0')
    A(f'v_xor_b32 {v(t2)}, {v(t2)}, {v(t1)}')
    A(f'v_mul_u32_u24 {v(xo)}, 1280, {v(t0)}')
    A(f'v_lshl_add_u32 {v(xo)}, {v(t2)}, 4, {v(xo)}')
    A(f'v_xor_b32 {v(xo+1)}, 64, {v(xo)}')
    A(f'v_add_u32 {v(xo+1)}, {8*1280}, {v(xo+1)}')
    A(f'v_lshlrev_b32 {v(t0)}, 2, {v(t1)}')
    A(f'v_and_b32 {v(t2)}, 15, v0')
    A(f'v_xor_b32 {v(t2)}, {v(t2)}, {v(t0)}')
    A(f'v_mul_u32_u24 {v(wo)}, 3456, {v(t1)}')
    A(f'v_lshl_add_u32 {v(wo)}, {v(t2)}, 4, {v(wo)}')
    A('s_add_u32 s32, s10, s11\ns_and_b32 s32, s32, 3\ns_mul_i32 s32, s32, 5\ns_lshr_b32 s32, s32, 1')
    A('s_lshl_b32 s33, s10, 2\ns_add_u32 s33, s33, s29\ns_mul_i32 s33, s33, 40960')
    A(f's_mul_i32 s34, s29, {16*3456}\ns_add_u32 s34, s34, s31')
    A('s_lshl_b32 s35, s29, 12')
    def issue(st):
        slot = st % RING
        A(f's_lshl_b32 s36, s32, 7\ns_add_u32 s36, s36, s33\ns_mul_i32 s37, s32, {64*3456}\ns_add_u32 s37, s37, s34')
        for n in range(4):
            A(f's_add_u32 m0, s35, {slot*16384+1024*n}')
            if n == 2: A('s_add_u32 s36, s36, 20480')
            A(f'buffer_load_dwordx4 {v(xo+(n&1))}, s[12:15], s36 offen lds')
            A(f's_add_u32 m0, s35, {65536+slot*16384+1024*n}')
            if n: A(f's_add_u32 s37, s37, {4*3456}')
            A(f'buffer_load_dwordx4 {v(wo)}, s[16:19], s37 offen lds')
        A('s_add_u32 s32, s32, 1\ns_cmp_eq_u32 s32, 10\ns_cselect_b32 s32, 0, s32')
    A('s_waitcnt lgkmcnt(0)')
    srd(A, 12, 8, 0, XB); srd(A, 16, 44, 0, 640 * 3456)
    issue(0)
    issue(1)
    ldE(A)
    srd(A, 64, 50, 0, 256)
    zero = V(); pv = V(); SD = V(8, 4); sto = V(); stw = V()
    WL = V(16, 4); PC = V(16, 4); PF = V(12, 4); wwa, wra = V(), V(); wso = V(4)
    A(f'v_mov_b32 {v(zero)}, 0')
    A('s_and_b32 s68, s10, 7\ns_lshl_b32 s69, s68, 12\ns_lshl_b32 s68, s68, 5')
    A(f'v_and_b32 {v(t0)}, 31, v0\nv_lshlrev_b32 {v(sto)}, 7, {v(t0)}\nv_and_b32 {v(t0)}, 32, v0\nv_add_u32 {v(sto)}, {v(sto)}, {v(t0)}')
    A(f'v_lshlrev_b32 {v(stw)}, 4, {v(lane)}\nv_add_u32 {v(stw)}, {STAT+1024}, {v(stw)}')
    A.stamp(1)
    seq = ['d0'] * 8 + ['d1'] * 8
    def wait_for(tag):
        last = max(i for i, t in enumerate(seq) if t == tag)
        A(f's_waitcnt vmcnt({len(seq) - 1 - last})')
    issued = 2
    for st in range(NST - 1):
        wait_for(f'd{st}' if st < NST - 2 else f'd{NST-1}')
        A('s_barrier')
        while issued < NST and issued <= st + 3: issue(issued); seq += [f'd{issued}'] * 8; issued += 1
        if st == POLL:
            A(f'buffer_load_dword {v(pv)}, {v(zero)}, s[64:67], s68 offen sc1'); seq += ['poll']
        if st == NST - 4:
            srd(A, 52, 6, L.OFF_ST, L.SZ_ST)
            A('s_cmp_lg_u32 s29, 0\ns_cbranch_scc1 k1_nost')
            wait_for('poll')
            A(f'v_readfirstlane_b32 s44, {v(pv)}')
            A('s_cmp_ge_u32 s44, 4\ns_cbranch_scc0 k1_nost')
            A(f'buffer_load_dwordx4 {v(SD,4)}, {v(sto)}, s[52:55], s69 offen sc1')
            A(f'buffer_load_dwordx4 {v(SD+4,4)}, {v(sto)}, s[52:55], s69 offen offset:64 sc1')
            A.label('k1_nost')
        if st == NST - 3:
            A(f'v_lshlrev_b32 {v(t1)}, 3, {v(lane)}\nv_lshlrev_b32 {v(t0)}, 4, {v(lane)}')
            srd(A, 20, 40, 0, 2048 * 642); srd(A, 24, 42, 0, 2048 * 642)
            A('s_mul_i32 s38, s2, 171\ns_lshr_b32 s38, s38, 9\ns_mul_i32 s39, s38, 3\ns_sub_u32 s39, s2, s39\ns_add_u32 s38, s38, 224')
            A('s_cmp_lt_u32 s29, 3\ns_cselect_b32 s38, s2, s38\ns_cselect_b32 s39, s29, s39')
            A('s_lshr_b32 s50, s38, 5\ns_lshl_b32 s50, s50, 7\ns_and_b32 s51, s38, 31\ns_add_u32 s50, s50, s51')
            A('s_mul_i32 s50, s50, 1284\ns_lshl_b32 s51, s39, 9\ns_add_u32 s50, s50, s51')
            for r in range(4):
                if r: A(f's_add_u32 s50, s50, {32*1284}')
                for pl in range(2): A(f'buffer_load_dwordx2 {v(WL+(pl*4+r)*2,2)}, {v(t1)}, s[{20+4*pl}:{23+4*pl}], s50 offen')
            srd(A, 56, 48, 0, 1728 * 1280)
            A('s_lshl_b32 s50, s2, 2\ns_add_u32 s50, s50, s29\ns_mul_i32 s50, s50, 2560')
            A(f'buffer_load_dwordx4 {v(PF,4)}, {v(t0)}, s[56:59], s50 offen')
            A(f'buffer_load_dwordx4 {v(PF+4,4)}, {v(t0)}, s[56:59], s50 offen offset:1024')
            A(f'buffer_load_dwordx2 {v(PF+8,2)}, {v(t1)}, s[56:59], s50 offen offset:2048')
            seq += ['pf'] * 11
            A(f's_add_u32 s60, s35, {WST}')
            A(f'v_lshl_add_u32 {v(wwa)}, {v(lane)}, 6, s60\nv_lshl_add_u32 {v(wra)}, {v(lane)}, 4, s60')
            A('s_lshl_b32 s61, s39, 8')
            A(f'v_mov_b32 {v(t2)}, 0x40000000')
            for i in range(4):
                A(f'v_add3_u32 {v(t0)}, {v(lane)}, s61, {64*i}' if 64 * i <= 64 else f'v_add_u32 {v(t0)}, {64*i}, {v(lane)}\nv_add_u32 {v(t0)}, s61, {v(t0)}')
                A(f'v_cmp_gt_u32 vcc, 648, {v(t0)}\nv_lshlrev_b32 {v(t0)}, 4, {v(t0)}')
                A(f'v_cndmask_b32 {v(wso+i)}, {v(t2)}, {v(t0)}, vcc')
            A(f's_mul_i32 s61, s38, {L.WTP}')
            A('s_mov_b32 s62, 0x05040100\ns_mov_b32 s63, 0x07060302')
    A('s_cmp_lg_u32 s29, 0\ns_cbranch_scc1 k1_lfin')
    A('s_cmp_ge_u32 s44, 4\ns_cbranch_scc1 k1_havest')
    A('s_mov_b32 s45, 0')
    A.label('k1_poll')
    A(f'buffer_load_dword {v(pv)}, {v(zero)}, s[64:67], s68 offen sc1')
    A('s_waitcnt vmcnt(0)')
    A(f'v_readfirstlane_b32 s44, {v(pv)}')
    A('s_cmp_ge_u32 s44, 4\ns_cbranch_scc1 k1_polled')
    A('s_add_u32 s45, s45, 1\ns_cmp_ge_u32 s45, 400\ns_cbranch_scc1 k1_slow')
    A('s_sleep 4')
    A('s_branch k1_poll')
    A.label('k1_polled')
    A(f'buffer_load_dwordx4 {v(SD,4)}, {v(sto)}, s[52:55], s69 offen sc1')
    A(f'buffer_load_dwordx4 {v(SD+4,4)}, {v(sto)}, s[52:55], s69 offen offset:64 sc1')
    A('s_waitcnt vmcnt(0)')
    A.label('k1_havest')
    A('s_waitcnt vmcnt(11)')
    A(f'ds_write_b128 {v(stw)}, {v(SD,4)}\nds_write_b128 {v(stw)}, {v(SD+4,4)} offset:1024')
    A.label('k1_lfin')
    A('s_waitcnt lgkmcnt(0)\ns_barrier')
    srd(A, 20, 6, L.OFF_WT, L.SZ_WT)
    A('s_waitcnt vmcnt(3)')
    for i in range(4):
        for r in range(4): A(f'v_perm_b32 {v(PC+4*i+r)}, {v(WL+(4+r)*2+(i>>1))}, {v(WL+r*2+(i>>1))}, s{62+(i&1)}')
        A(f'ds_write_b128 {v(wwa)}, {v(PC+4*i,4)} offset:{16*i}')
    A('s_waitcnt lgkmcnt(0)')
    for i in range(4): A(f'ds_read_b128 {v(WL+4*i,4)}, {v(wra)} offset:{1024*i}')
    for i in range(4):
        A(f's_waitcnt lgkmcnt({3-i})')
        A(f'buffer_store_dwordx4 {v(WL+4*i,4)}, {v(wso+i)}, s[20:23], s61 offen sc1')
    if A.prof: A('s_waitcnt vmcnt(0)')
    A.flush(0, 2)
    A('s_branch a_done')
    A.label('k1_slow')
    sm, sq = V(), V(); UP = V(2)
    A(f'v_mul_u32_u24 {v(t0)}, 1280, {v(lane)}')
    A(f's_mul_i32 s40, s10, {128*1280}\ns_mov_b32 s41, 0')
    A.label('k1_slow_rows')
    A(f'v_mov_b32 {v(sm)}, 0\nv_mov_b32 {v(sq)}, 0\ns_mov_b32 s42, 0')
    A.label('k1_slow_k')
    A('s_add_u32 s43, s40, s42')
    A(f'buffer_load_dwordx4 {v(SD,4)}, {v(t0)}, s[12:15], s43 offen')
    A('s_waitcnt vmcnt(0)')
    for i in range(4):
        unpack(A, UP, UP + 1, SD + i)
        for e in range(2): A(f'v_add_f32 {v(sm)}, {v(sm)}, {v(UP+e)}\nv_fmac_f32 {v(sq)}, {v(UP+e)}, {v(UP+e)}')
    A('s_add_u32 s42, s42, 16\ns_cmp_lt_u32 s42, 1280\ns_cbranch_scc1 k1_slow_k')
    A(f'v_mul_f32 {v(sm)}, {fh(1/640)}, {v(sm)}\nv_mul_f32 {v(sq)}, {fh(1/640)}, {v(sq)}')
    A(f'v_fma_f32 {v(sq)}, -{v(sm)}, {v(sm)}, {v(sq)}')
    rstd(A, SD, sq)
    rnd_bf16(A, sm, sm)
    A(f'v_mul_f32 {v(SD+1)}, {v(SD)}, {v(sm)}\nv_mov_b32 {v(SD+2)}, {v(SD)}')
    A(f'v_mov_b32 {v(SD+3)}, {v(SD+1)}')
    A(f'ds_write_b128 {v(stw)}, {v(SD,4)}')
    A(f'v_add_u32 {v(stw)}, 1024, {v(stw)}')
    A(f's_add_u32 s40, s40, {64*1280}\ns_add_u32 s41, s41, 1\ns_cmp_lt_u32 s41, 2')
    A('s_waitcnt lgkmcnt(0)')
    A('s_cbranch_scc1 k1_slow_rows')
    A('s_branch k1_lfin')
    hi = V.hi
    A.label('k1_comp')
    V.reset(base_mark)
    b1r = V(2, 2); b1a = V()
    A('s_waitcnt lgkmcnt(0)')
    ldE(A)
    srd(A, 56, 46, 0, 3456)
    A(f'v_lshlrev_b32 {v(t0)}, 2, {v(lane)}\ns_lshl_b32 s31, s11, 8')
    A(f'buffer_load_dword {v(b1r)}, {v(t0)}, s[56:59], s31 offen')
    A(f'v_lshlrev_b32 {v(b1a)}, 3, {v(lane)}\nv_add_u32 {v(b1a)}, {STAT}, {v(b1a)}')
    srd(A, 24, 6, L.OFF_H, L.SZ_H)
    A('s_and_b32 s30, s3, 1\ns_lshr_b32 s29, s3, 1')
    xa = V(4); wa = V(2); j, h = V(), V()
    A(f'v_and_b32 {v(j)}, 31, v0\nv_bfe_u32 {v(h)}, v0, 5, 1')
    A(f'v_bfe_u32 {v(t0)}, v0, 1, 3\nv_xor_b32 {v(t0)}, {v(t0)}, {v(h)}\nv_lshlrev_b32 {v(t0)}, 4, {v(t0)}')
    A(f'v_lshl_add_u32 {v(t0)}, {v(j)}, 7, {v(t0)}')
    A('s_lshl_b32 s40, s29, 13')
    A(f'v_add_u32 {v(xa)}, s40, {v(t0)}')
    for p in range(1, 4): A(f'v_xor_b32 {v(xa+p)}, {32*p}, {v(xa)}')
    A(f'v_bfe_u32 {v(t0)}, v0, 2, 2')
    A(f'v_lshl_add_u32 {v(t1)}, {v(h)}, 3, {v(t0)}')
    A(f'v_lshlrev_b32 {v(t1)}, 8, {v(t1)}')
    A(f'v_bfe_u32 {v(t2)}, v0, 4, 1')
    A(f'v_lshl_add_u32 {v(t1)}, {v(t2)}, 5, {v(t1)}')
    A(f'v_and_b32 {v(t2)}, 3, v0')
    A(f'v_lshl_add_u32 {v(t1)}, {v(t2)}, 3, {v(t1)}')
    A(f'v_lshl_add_u32 {v(t1)}, {v(t0)}, 6, {v(t1)}')
    A('s_lshl_b32 s41, s30, 1\ns_or_b32 s41, s41, s29\ns_lshl_b32 s41, s41, 6\ns_or_b32 s41, s41, 65536')
    A(f'v_xor_b32 {v(wa)}, s41, {v(t1)}\nv_xor_b32 {v(wa+1)}, 64, {v(wa)}')
    SEL = V(4, 4)
    A(f'v_lshrrev_b32 {v(t0)}, 2, v0\nv_xor_b32 {v(t0)}, {v(t0)}, v0\nv_and_b32 {v(t0)}, 4, {v(t0)}')
    A(f'v_cmp_eq_u32 vcc, 0, {v(t0)}')
    A(f'v_mov_b32 {v(t0)}, 0x3f803f80')
    for i in range(4): A(f'v_cndmask_b32 {v(SEL+i)}, 0, {v(t0)}, vcc')
    A(f'v_and_b32 {v(t0)}, 11, v0\nv_cmp_eq_u32 s[98:99], 0, {v(t0)}')
    cw, ca, sra, ho = V(), V(2), V(), V()
    A(f's_lshl_b32 s40, s30, 8\ns_lshl_b32 s41, s29, 7\ns_add_u32 s40, s40, s41\ns_add_u32 s40, s40, {STAT}')
    A(f'v_and_b32 {v(t1)}, 48, v0\nv_bfe_u32 {v(t0)}, v0, 2, 1')
    A(f'v_lshl_add_u32 {v(t1)}, {v(t0)}, 6, {v(t1)}')
    A(f'v_add_u32 {v(cw)}, s40, {v(t1)}')
    A(f'v_lshl_add_u32 {v(ca)}, {v(h)}, 4, s40')
    A(f'v_xor_b32 {v(ca+1)}, 128, {v(ca)}')
    A(f's_lshl_b32 s40, s29, 10\ns_and_b32 s41, s10, 8\ns_add_u32 s40, s40, s41\ns_add_u32 s40, s40, {STAT+1024}')
    A(f'v_lshl_add_u32 {v(sra)}, {v(j)}, 4, s40')
    k1 = V(2, 2); k2 = V(2, 2); one = V(2, 2)
    c1 = -2 * math.sqrt(2 / math.pi) * LOG2E
    A(f'v_mov_b32 {v(k1)}, {fh(c1)}\nv_mov_b32 {v(k2)}, {fh(c1*0.044715)}\nv_mov_b32 {v(one)}, 1.0')
    A(f'v_lshlrev_b32 {v(ho)}, 4, {v(lane)}')
    A('s_lshl_b32 s40, s10, 1\ns_add_u32 s40, s40, s29\ns_mul_i32 s40, s40, 216\ns_lshl_b32 s41, s11, 3\ns_add_u32 s40, s40, s41')
    A('s_lshl_b32 s41, s30, 2\ns_add_u32 s40, s40, s41\ns_lshl_b32 s40, s40, 10')
    A('s_lshl_b32 s41, s29, 11\ns_add_u32 s44, s40, s41\ns_xor_b32 s41, s41, 2048\ns_add_u32 s46, s40, s41')
    A(f's_add_u32 s45, s44, {108*1024}\ns_add_u32 s47, s46, {108*1024}')
    ACC = V(64, 4); CS = V(4, 4)
    mk = V.mark()
    NB = 4
    XF = V(8 * NB, 4); WF = V(8 * NB, 4)
    def rd(k):
        st, p = divmod(k, 4); off = (st % RING) * 16384; b = k % NB
        out = []
        for t in range(2):
            out.append(f'ds_read_b128 {v(XF+8*b+4*t,4)}, {v(xa+p)} offset:{off+4096*t}')
            for e in range(2):
                out.append(f'ds_read_b64_tr_b16 {v(WF+8*b+4*t+2*e,2)}, {v(wa+t)} offset:{off+4096*p+1024*e}')
        return out
    NK = 4 * NST
    A.stamp(1)
    A('s_barrier')
    A.stamp(2)
    for x in rd(0) + rd(1): A(x)
    for k in range(NK):
        st, p = divmod(k, 4); b = k % NB
        if k in (13, 25): A.stamp(3 if k == 13 else 4)
        nxt = rd(k + 2) if k + 2 < NK else []
        A(f's_waitcnt lgkmcnt({6 if k + 1 < NK else 0})')
        for n, (t, u) in enumerate(((0, 0), (0, 1), (1, 1), (1, 0))):
            d = v(ACC + (t * 2 + u) * 16, 16)
            A(f'v_mfma_f32_32x32x16_bf16 {d}, {v(WF+8*b+4*t,4)}, {v(XF+8*b+4*u,4)}, {d if k else 0}')
            if n == 0 and p == 2 and st < NST - 2: A('s_waitcnt lgkmcnt(0)\ns_barrier')
            for x in nxt[2*n:2*n+2]: A(x)
        A(f'v_mfma_f32_16x16x32_bf16 {v(CS,4)}, {v(WF+8*b,4)}, {v(SEL,4)}, {v(CS,4) if k else 0}')
        if k == WK:
            A('s_waitcnt vmcnt(0)')
            A(f'v_and_b32 {v(b1r+1)}, 0xffff0000, {v(b1r)}\nv_lshlrev_b32 {v(b1r)}, 16, {v(b1r)}')
            A(f'ds_write_b64 {v(b1a)}, {v(b1r,2)} offset:512')
    A.stamp(5)
    V.reset(mk)
    A('s_mov_b64 exec, s[98:99]')
    A(f'ds_write_b128 {v(cw)}, {v(CS,4)}')
    A('s_mov_b64 exec, -1')
    A('s_waitcnt lgkmcnt(0)\ns_barrier')
    A('s_cmp_eq_u32 s11, 13\ns_cselect_b32 s40, s30, 0\ns_cmp_lg_u32 s40, 0\ns_cbranch_scc1 a_done')
    A.stamp(6)
    CC = V(32, 4); BB = V(32, 4); rr = V(4, 2)
    A(f'ds_read_b64 {v(rr,2)}, {v(sra)}\nds_read_b64 {v(rr+2,2)}, {v(sra)} offset:512')
    for i in range(6):
        a_ = v(ca + i // 4); o = 32 * (i % 4)
        A(f'ds_read_b128 {v(CC+4*i,4)}, {a_} offset:{o}\nds_read_b128 {v(BB+4*i,4)}, {a_} offset:{512+o}')
    Q = V(8, 2); HO = V(8, 4)
    n = 0
    for t in range(2):
        for gp in range(2):
            ci = t * 2 + gp
            if ci == 1:
                for i in (6, 7):
                    a_ = v(ca + 1); o = 32 * (i % 4)
                    A(f'ds_read_b128 {v(CC+4*i,4)}, {a_} offset:{o}\nds_read_b128 {v(BB+4*i,4)}, {a_} offset:{512+o}')
            A(f's_waitcnt lgkmcnt({[8, 8, 4, 0][ci]})')
            for u_ in range(2):
                u = ACC + (t * 2 + u_) * 16 + 8 * gp; R_ = v(rr + 2 * u_, 2)
                for i in range(4): A(f'v_pk_fma_f32 {v(Q+2*i,2)}, {v(CC+8*ci+2*i,2)}, {R_}, {v(BB+8*ci+2*i,2)} op_sel:[0,1,0] op_sel_hi:[1,1,1] neg_lo:[1,0,0] neg_hi:[1,0,0]')
                for i in range(4): A(f'v_pk_fma_f32 {v(u+2*i,2)}, {v(u+2*i,2)}, {R_}, {v(Q+2*i,2)} op_sel_hi:[1,0,1]')
                for i in range(4): A(f'v_pk_mul_f32 {v(Q+2*i,2)}, {v(u+2*i,2)}, {v(u+2*i,2)}')
                for i in range(4): A(f'v_pk_fma_f32 {v(Q+2*i,2)}, {v(Q+2*i,2)}, {v(k2,2)}, {v(k1,2)} op_sel_hi:[1,0,0]')
                for i in range(4): A(f'v_pk_mul_f32 {v(Q+2*i,2)}, {v(Q+2*i,2)}, {v(u+2*i,2)}')
                for i in range(8): A(f'v_exp_f32 {v(Q+i)}, {v(Q+i)}')
                for i in range(4): A(f'v_pk_add_f32 {v(Q+2*i,2)}, {v(Q+2*i,2)}, {v(one,2)} {BC}')
                for i in range(8): A(f'v_rcp_f32 {v(Q+i)}, {v(Q+i)}')
                for i in range(4): A(f'v_pk_mul_f32 {v(u+2*i,2)}, {v(u+2*i,2)}, {v(Q+2*i,2)}')
                d = HO + 4 * (n & 1); n += 1
                for i in range(4): A(f'v_cvt_pk_bf16_f32 {v(d+i)}, {v(u+2*i)}, {v(u+2*i+1)}')
                A(f'buffer_store_dwordx4 {v(d,4)}, {v(ho)}, s[24:27], s{44+2*t+u_} offen offset:{1024*gp} sc1')
    A.stamp(7)
    A(f's_lshl_b32 s58, s10, 7\ns_lshl_b32 s59, s11, 3\ns_add_u32 s58, s58, s59\ns_add_u32 s58, s58, {L.FL_H}')
    A.flush(0, 8)
    A.label('a_done')
    A('s_waitcnt vmcnt(0)')
    A.label('a_done2')
    mkE(A)
    A('s_barrier')
    put_flag(A, 58)
    A('s_cmp_lt_u32 s2, 96\ns_cbranch_scc1 a_nog')
    A('s_cmp_lt_u32 s3, 4\ns_cbranch_scc1 k2_comp')
    A('s_branch k2_loader')
    A.label('a_nog')
    A('s_cmp_lt_u32 s2, 82\ns_cbranch_scc1 k2_fft')
    A('s_lshl_b32 s40, s2, 3\ns_or_b32 s40, s40, s3\ns_cmp_lg_u32 s40, 82*8\ns_cbranch_scc1 k3_start')
    for n in range(2): poll(A, 0, 0x7f7f7f7f7f7f7f7f, 8, L.FL_H + 1024 * n, wide=True)
    poll(A, 0, 0xffff, 8, L.FL_A, wide=True)
    A('s_mov_b32 s58, 0')
    put_flag(A, 58)
    A('s_branch k3_start')
    return max(hi, V.hi)

def gen_k1(A):
    header(A, NAME + '_kernel')
    A('s_cmp_ge_u32 s2, 256\ns_cbranch_scc1 k_end')
    A('s_load_dwordx2 s[6:7], s[0:1], 80\ns_load_dwordx2 s[8:9], s[0:1], 0\ns_load_dwordx4 s[40:43], s[0:1], 8\ns_load_dwordx4 s[44:47], s[0:1], 32\ns_load_dwordx2 s[48:49], s[0:1], 48\ns_load_dwordx2 s[50:51], s[0:1], 72')
    code_prefetch(A)
    A('v_lshrrev_b32 v1, 6, v0')
    A('v_readfirstlane_b32 s3, v1')
    A('s_and_b32 s4, s2, 7\ns_lshr_b32 s5, s2, 3')
    A.stamp(0)
    A('s_cmp_ge_u32 s5, 28\ns_cbranch_scc1 k1_fft')
    A.label('k1_gemm')
    n2 = gen_gemm(A)
    n1 = gen_fft(A)
    return max(n1, n2)
```

```python
from asmlib import *
import layouts as L
from gen import VA, srd, header, unpack, XB, mkE, put_flag, poll

NST = 9; RING = 6; STB = 24576; KS = 6
K2_LDS = RING * STB
PRE = 3
NG = 160

def pk_cmul_conj(A, re, im, c, sn, t):
    A(f'v_pk_mul_f32 {v(t,2)}, {v(re,2)}, {v(sn,2)}')
    A(f'v_pk_mul_f32 {v(re,2)}, {v(re,2)}, {v(c,2)}')
    A(f'v_pk_fma_f32 {v(re,2)}, {v(im,2)}, {v(sn,2)}, {v(re,2)}')
    A(f'v_pk_fma_f32 {v(im,2)}, {v(im,2)}, {v(c,2)}, {v(t,2)} neg_lo:[0,0,1] neg_hi:[0,0,1]')

WR = 160
def fft_ids(A):
    A('s_bfe_u32 s24, s2, 0x10003\ns_and_b32 s25, s2, 7\ns_mul_i32 s25, s25, 5\ns_lshr_b32 s26, s2, 4\ns_add_u32 s25, s25, s26')
    A('s_and_b32 s26, s2, 1\ns_cmp_ge_u32 s2, 80\ns_cselect_b32 s24, s26, s24\ns_cselect_b32 s25, 40, s25')
def gather(A, pr): pass
def gen_fft(A):
    V = VA()
    A.label('k2_fft')
    A.stamp(0)
    A(f's_mov_b32 s10, {2*L.GP}')
    fft_ids(A)
    lane, t0, t1, t2, vo, vw = V(), V(), V(), V(), V(), V()
    A(f'v_and_b32 {v(lane)}, 63, v0')
    A(f'v_lshrrev_b32 {v(t0)}, 3, {v(lane)}')
    A(f'v_bfe_u32 {v(t1)}, v0, 4, 3')
    A(f'v_and_b32 {v(t2)}, 7, v0')
    A(f'v_xor_b32 {v(t1)}, {v(t1)}, {v(t2)}')
    A(f'v_lshlrev_b32 {v(t1)}, 4, {v(t1)}')
    A(f'v_mad_u32_u24 {v(vo)}, {v(t0)}, s10, {v(t1)}')
    A(f's_lshl_b32 s28, s25, 7')
    A(f's_lshl_b32 s27, s3, 4\ns_add_u32 s27, s27, s24\ns_mul_i32 s27, s27, {L.GP}\ns_add_u32 s27, s27, s28')
    A('s_lshl_b32 s29, s3, 10')
    srd(A, 12, 6, L.OFF_A, L.SZ_A)
    A(f's_mov_b32 s11, {L.WTP}')
    A(f'v_mad_u32_u24 {v(vw)}, {v(t0)}, s11, {v(t1)}')
    A(f's_mul_i32 s37, s3, {8*L.WTP}\ns_mul_i32 s38, s24, {321*16}\ns_add_u32 s37, s37, s38\ns_add_u32 s37, s37, s28')
    srd(A, 16, 6, L.OFF_WT, L.SZ_WT)
    A('s_mov_b32 s42, s27')
    srd(A, 20, 6, L.OFF_P, L.SZ_A)
    j, h = V(), V()
    A(f'v_and_b32 {v(j)}, 31, v0')
    A(f'v_bfe_u32 {v(h)}, v0, 5, 1')
    fj, fu, sa, pa, sb, pb = V(), V(), V(), V(), V(), V()
    A(f'v_cvt_f32_u32 {v(fj)}, {v(j)}')
    A(f'v_bfe_u32 {v(t0)}, v0, 5, 3\nv_lshlrev_b32 {v(t0)}, 2, {v(t0)}')
    A(f'v_cvt_f32_u32 {v(fu)}, {v(t0)}')
    A(f's_cmp_eq_u32 s24, 0\ns_cselect_b32 s30, 0, {fh(1/64)}')
    A('s_cmp_ge_u32 s3, 4\ns_cselect_b32 s31, 0, s30\ns_cselect_b32 s32, s30, 0\ns_cselect_b64 vcc, -1, 0')
    A(f'v_mul_f32 {v(sb)}, {fh(1/32)}, {v(fj)}')
    A(f'v_add_f32 {v(sa)}, s31, {v(sb)}')
    A(f'v_mul_f32 {v(pa)}, {v(sa)}, {v(fu)}')
    A(f'v_fmac_f32 {v(pa)}, s32, {v(fj)}')
    A(f'v_mul_f32 {v(pb)}, {v(sb)}, {v(fu)}')
    FA = V(32, 4); FB = V(32, 4); FT = V(32, 4); TB = V(32, 4)
    X = V(16, 4); Wd = V(16, 4); AC = V(64, 4); tp = V(4, 2); wu = V(4)
    assert Wd == WR, Wd
    CT = 65536
    l16 = V()
    A(f'v_lshlrev_b32 {v(l16)}, 4, {v(lane)}\nv_add_u32 {v(l16)}, {CT}, {v(l16)}')
    for r in range(4):
        an, bn = AC + 20 + r, AC + 40 + r
        if r: A(f'v_fmamk_f32 {v(an)}, {v(sa)}, {fh(float(r))}, {v(pa)}\nv_fmamk_f32 {v(bn)}, {v(sb)}, {fh(float(r))}, {v(pb)}')
        else: an, bn = pa, pb
        A(f'v_cos_f32 {v(AC+24+r)}, {v(an)}\nv_sin_f32 {v(AC+28+r)}, {v(an)}')
        A(f'v_mul_f32 {v(AC+8+r)}, {fh(1/32)}, {v(an)}')
        A(f'v_cos_f32 {v(AC+32+r)}, {v(bn)}\nv_sin_f32 {v(AC+36+r)}, {v(bn)}')
        A(f'v_sin_f32 {v(AC+12+r)}, {v(AC+8+r)}\nv_cos_f32 {v(AC+8+r)}, {v(AC+8+r)}')
        A(f'v_cvt_pk_bf16_f32 {v(AC+r)}, {v(AC+24+r)}, {v(AC+28+r)}')
        A(f'v_cvt_pk_bf16_f32 {v(AC+4+r)}, -{v(AC+28+r)}, {v(AC+24+r)}')
        A(f'v_cvt_pk_bf16_f32 {v(AC+16+r)}, {v(AC+32+r)}, {v(AC+36+r)}')
        A(f'v_cvt_pk_bf16_f32 {v(AC+44+r)}, -{v(AC+36+r)}, {v(AC+32+r)}')
        A(f'v_cndmask_b32 {v(AC+16+r)}, {v(AC+16+r)}, {v(AC+44+r)}, vcc')
    A('s_lshr_b32 s39, s3, 2\ns_mul_i32 s39, s39, 12288\ns_add_u32 s39, s39, s29')
    A(f'v_add_u32 {v(t0)}, s39, {v(l16)}\nv_add_u32 {v(t2)}, s29, {v(l16)}')
    for m in range(4): A(f'ds_write_b128 {v(t0)}, {v(AC+4*m,4)} offset:{4096*m}')
    A(f'ds_write_b128 {v(t2)}, {v(AC+16,4)} offset:32768')
    ra, so = fj, fu
    A(f'v_bfe_u32 {v(t0)}, v0, 1, 3\nv_xor_b32 {v(t0)}, s3, {v(t0)}\nv_lshlrev_b32 {v(t0)}, 4, {v(t0)}')
    A(f'v_lshl_add_u32 {v(ra)}, {v(lane)}, 7, {v(t0)}')
    A(f'v_and_b32 {v(t0)}, 1, v0\nv_lshlrev_b32 {v(t0)}, 2, {v(t0)}\nv_xor_b32 {v(t0)}, s3, {v(t0)}\nv_lshlrev_b32 {v(t0)}, 4, {v(t0)}')
    A(f'v_lshl_add_u32 {v(so)}, {v(j)}, 10, {v(t0)}')
    A(f'v_lshl_add_u32 {v(so)}, {v(h)}, 7, {v(so)}')
    A('s_mov_b32 s41, 0xffff0000')
    A('s_waitcnt lgkmcnt(0)\ns_barrier')
    def tread(part):
        for q in range(4):
            A(f'ds_read_b128 {v(TB+4*q,4)}, {v(l16)} offset:{16384*part+8192+1024*q}')
            A(f'ds_read_b128 {v(TB+16+4*q,4)}, {v(l16)} offset:{16384*part+12288+1024*q}')
    for q in range(8): A(f'ds_read_b128 {v(FA+4*q,4)}, {v(l16)} offset:{1024*q}')
    tread(0)
    for q in range(8): A(f'ds_read_b128 {v(FB+4*q,4)}, {v(l16)} offset:{32768+1024*q}')
    for q in range(8): A(f'ds_read_b128 {v(FT+4*q,4)}, {v(l16)} offset:{16384+1024*q}')
    A.stamp(1)
    A('s_cmp_lt_u32 s3, 5\ns_cbranch_scc1 k2_nopoll')
    A(f's_sub_u32 s44, s3, 5\ns_lshl_b32 s44, s44, 10\ns_mov_b32 s46, 0x7f7f7f7f\ns_mov_b32 s47, s46\ns_cmp_eq_u32 s3, 7\ns_cselect_b64 s[46:47], 0xffff, s[46:47]')
    poll(A, 's44', 's[46:47]', AC + 56, L.FL_H, wide=True)
    A.label('k2_nopoll')
    A('s_barrier')
    for i in range(4):
        A(f's_add_u32 m0, s29, {8192*i}')
        if i: A(f's_add_u32 s27, s27, {128*L.GP}')
        A(f'buffer_load_dwordx4 {v(vo)}, s[12:15], s27 offen sc1 lds')
    for i in range(4):
        A(f's_add_u32 m0, s29, {32768+8192*i}')
        if i: A(f's_add_u32 s37, s37, {64*L.WTP}')
        A(f'buffer_load_dwordx4 {v(vw)}, s[16:19], s37 offen sc1 lds')
    A('s_waitcnt vmcnt(0) lgkmcnt(0)')
    A.stamp(2)
    A('s_barrier')
    A.stamp(3)
    for q in range(4): A(f'ds_read_b128 {v(X+4*q,4)}, {v(ra)} offset:{q*8192}')
    def mm(M, data_is_A, q, o):
        for D, off in ((AC + o, 0), (AC + o + 16, 16)):
            a_, b_ = (v(X+4*q,4), v(M+off+4*q,4)) if data_is_A else (v(M+off+4*q,4), v(X+4*q,4))
            A(f'v_mfma_f32_32x32x16_bf16 {v(D,16)}, {a_}, {b_}, {v(D,16) if q else 0}')
    def twq(o, q):
        K = range(4 * q, 4 * q + 4)
        for k in K: A(f'v_mul_f32 {v(tp+(k&3))}, {v(AC+o+k)}, {v(TB+k)}')
        for k in K: A(f'v_mul_f32 {v(AC+o+k)}, {v(AC+o+k)}, {v(TB+16+k)}')
        for k in K: A(f'v_fmac_f32 {v(tp+(k&3))}, {v(AC+o+16+k)}, {v(TB+16+k)}')
        for k in K: A(f'v_fma_f32 {v(AC+o+16+k)}, {v(AC+o+16+k)}, {v(TB+k)}, -{v(AC+o+k)}')
        for k in K: A(f'v_cvt_pk_bf16_f32 {v(X+k)}, {v(tp+(k&3))}, {v(AC+o+16+k)}')
    for q in range(4):
        A(f's_waitcnt lgkmcnt({3-q})')
        mm(FA, True, q, 0)
    for q in range(4): twq(0, q); mm(FB, False, q, 32)
    for q in range(4): A(f'ds_read_b128 {v(Wd+4*q,4)}, {v(ra)} offset:{32768+q*8192}')
    tread(1)
    A('s_waitcnt lgkmcnt(8)')
    for q in range(4):
        K = range(4 * q, 4 * q + 4)
        for k in K: A(f'v_lshlrev_b32 {v(wu+(k&3))}, 16, {v(Wd+k)}')
        for k in K: A(f'v_and_b32 {v(Wd+k)}, s41, {v(Wd+k)}')
        for k in K: A(f'v_mul_f32 {v(tp+(k&3))}, {v(AC+48+k)}, {v(Wd+k)}')
        for k in K: A(f'v_mul_f32 {v(AC+48+k)}, {v(AC+48+k)}, {v(wu+(k&3))}')
        for k in K: A(f'v_fma_f32 {v(tp+(k&3))}, {v(AC+32+k)}, {v(wu+(k&3))}, -{v(tp+(k&3))}')
        for k in K: A(f'v_fmac_f32 {v(AC+48+k)}, {v(AC+32+k)}, {v(Wd+k)}')
        for k in K: A(f'v_cvt_pk_bf16_f32 {v(X+k)}, {v(tp+(k&3))}, -{v(AC+48+k)}')
        mm(FB, True, q, 0)
    A('s_waitcnt lgkmcnt(0)')
    for q in range(4): twq(0, q); mm(FT, True, q, 32)
    for g in range(1, 4): A(f'v_xor_b32 {v(tp+g)}, {16*g}, {v(so)}')
    for g in range(4):
        for r in range(4): A(f'v_cvt_pk_bf16_f32 {v(Wd+4*g+r)}, {v(AC+32+4*g+r)}, -{v(AC+48+4*g+r)}')
        A(f'ds_write_b128 {v(tp+g if g else so)}, {v(Wd+4*g,4)} offset:{256*g}')
    A(f'v_subrev_u32 {v(t2)}, {CT}, {v(t2)}')
    A('s_waitcnt lgkmcnt(0)')
    A.stamp(4)
    A('s_barrier')
    for i in range(4): A(f'ds_read_b128 {v(AC+4*i,4)}, {v(t2)} offset:{8192*i}')
    for i in range(4):
        A(f's_waitcnt lgkmcnt({3-i})')
        A(f'buffer_store_dwordx4 {v(AC+4*i,4)}, {v(vo)}, s[20:23], s42 offen sc1')
        if i < 3: A(f's_add_u32 s42, s42, {128*L.GP}')
    A(f's_lshl_b32 s58, s2, 3\ns_add_u32 s58, s58, {L.FL_P}')
    A('s_waitcnt vmcnt(0)')
    A.flush(1, 5)
    A('s_branch b_done')
    return V.hi

def gen_gemm(A):
    V = VA()
    lane = V(); t0 = V(); t1 = V(); t2 = V()
    def ids():
        A.stamp(0)
        A('s_lshr_b32 s10, s2, 5\ns_sub_u32 s10, s10, 3')
        A('s_and_b32 s24, s2, 7\ns_lshl_b32 s24, s24, 2\ns_bfe_u32 s11, s2, 0x20003\ns_add_u32 s24, s24, s11')
        A('s_lshr_b32 s25, s24, 4\ns_and_b32 s26, s24, 15')
        A(f'v_and_b32 {v(lane)}, 63, v0')
    mk0 = V.mark()
    A.label('k2_loader')
    A('s_load_dwordx2 s[8:9], s[0:1], 48')
    ids()
    lo = V()
    A(f'v_lshrrev_b32 {v(t1)}, 4, {v(lane)}\nv_lshlrev_b32 {v(t0)}, 2, {v(t1)}\nv_and_b32 {v(t2)}, 15, v0')
    A(f'v_xor_b32 {v(t2)}, {v(t2)}, {v(t0)}')
    A(f'v_mul_u32_u24 {v(lo)}, 1280, {v(t1)}')
    A(f'v_lshl_add_u32 {v(lo)}, {v(t2)}, 4, {v(lo)}')
    A('s_sub_u32 s27, s3, 4')
    A(f's_mul_i32 s28, s25, 36\ns_add_u32 s28, s28, s27\ns_mul_i32 s28, s28, {24*1280}\ns_lshl_b32 s29, s10, 8\ns_add_u32 s28, s28, s29')
    A('s_mul_i32 s29, s27, 6144')
    A('s_waitcnt lgkmcnt(0)')
    srd(A, 12, 8, 0, 1728 * 1280)
    def issue(st):
        slot = st % RING
        for i in range(6):
            A(f's_add_u32 m0, s29, {slot*STB+i*1024}')
            if i or st: A(f's_add_u32 s28, s28, {5120 if i else 96*1280-5*5120}')
            else: A('s_nop 0')
            A(f'buffer_load_dwordx4 {v(lo)}, s[12:15], s28 offen lds')
    for st in range(PRE): issue(st)
    issued = PRE
    A.stamp(1)
    for st in range(NST):
        A(f's_waitcnt vmcnt({6*(issued-st-1)})')
        A('s_barrier')
        for _ in range(2 if st == 0 else 1):
            if issued < NST and issued - RING + 2 <= st: issue(issued); issued += 1
    assert issued == NST
    A.flush(1, 2)
    A('s_branch b_done')
    A.label('k2_comp')
    V.reset(mk0)
    ids()
    ho = V()
    A(f'v_lshlrev_b32 {v(ho)}, 4, {v(lane)}')
    A('s_lshl_b32 s27, s26, 2\ns_add_u32 s27, s27, s3')
    A('s_mul_i32 s28, s27, 108\ns_mul_i32 s29, s25, 54\ns_add_u32 s28, s28, s29\ns_lshl_b32 s28, s28, 10')
    srd(A, 12, 6, L.OFF_H, L.SZ_H)
    HW = 18
    HF = V(4 * HW, 4); ACC = V(64, 4); AF = V(32, 4)
    def hload(k):
        if k % 4 == 0 and k: A('s_add_u32 s28, s28, 4096')
        A(f'buffer_load_dwordx4 {v(HF+4*(k%HW),4)}, {v(ho)}, s[12:15], s28 offen offset:{(k%4)*1024} sc1')
    srd(A, 16, 6, L.OFF_PART, L.SZ_PART)
    ab = V(12)
    A(f'v_bfe_u32 {v(t0)}, v0, 2, 2')
    A(f'v_bfe_u32 {v(t1)}, v0, 5, 1')
    A(f'v_lshl_add_u32 {v(t2)}, {v(t1)}, 2, {v(t0)}')
    A(f'v_lshlrev_b32 {v(t2)}, 8, {v(t2)}')
    A(f'v_lshl_add_u32 {v(t2)}, {v(t0)}, 6, {v(t2)}')
    A(f'v_bfe_u32 {v(t0)}, v0, 4, 1\nv_lshl_add_u32 {v(t2)}, {v(t0)}, 5, {v(t2)}')
    A(f'v_and_b32 {v(t0)}, 1, v0\nv_lshl_add_u32 {v(t2)}, {v(t0)}, 4, {v(t2)}')
    A(f'v_bfe_u32 {v(t0)}, v0, 1, 1\nv_lshl_add_u32 {v(ab)}, {v(t0)}, 3, {v(t2)}')
    for t in range(1, 4): A(f'v_xor_b32 {v(ab+t)}, {64*t}, {v(ab)}')
    for sp in range(1, 3):
        for t in range(4): A(f'v_add_u32 {v(ab+4*sp+t)}, {2*STB*sp}, {v(ab+t)}')
    so = V()
    A(f'v_bfe_u32 {v(t0)}, v0, 2, 3')
    A(f'v_mul_u32_u24 {v(so)}, 5120, {v(t0)}')
    A(f'v_and_b32 {v(t0)}, 3, v0')
    A(f'v_lshl_add_u32 {v(so)}, {v(t0)}, 4, {v(so)}')
    A(f'v_lshl_add_u32 {v(so)}, {v(t1)}, 6, {v(so)}')
    A(f's_mul_i32 s30, s25, {L.SZ_PART1}\ns_mul_i32 s31, s27, 40960\ns_add_u32 s30, s30, s31\ns_lshl_b32 s31, s10, 10\ns_add_u32 s30, s30, s31')
    def rd(k, t):
        st, q = divmod(k, KS); slot = st % RING
        for e in range(2):
            A(f'ds_read_b64_tr_b16 {v(AF+(k&1)*16+4*t+2*e,2)}, {v(ab+4*(slot//2)+t)} offset:{(slot%2)*STB+q*4096+e*2048}')
    NK = NST * KS
    A('s_lshl_b32 s32, s26, 7\ns_movk_i32 s34, 0x7f\ns_cmp_eq_u32 s25, 0\ns_cselect_b32 s34, s34, 0x3fc0\ns_mov_b32 s35, 0')
    A.stamp(1)
    poll(A, 's32', 's[34:35]', AF, L.FL_H)
    A.stamp(2)
    for k in range(HW): hload(k)
    A('s_barrier')
    for t in range(4): rd(0, t)
    hissued = HW
    for k in range(NK):
        if k in (18, 36): A.stamp(3 if k == 18 else 4)
        if k + 1 < NK and (k + 1) % KS == 0: A('s_barrier')
        A(f's_waitcnt vmcnt({hissued - k - 1})')
        for t in range(4):
            A(f's_waitcnt lgkmcnt({6 if k + 1 < NK else 6 - 2 * t})')
            A(f'v_mfma_f32_32x32x16_bf16 {v(ACC+16*t,16)}, {v(AF+(k&1)*16+4*t,4)}, {v(HF+4*(k%HW),4)}, {v(ACC+16*t,16) if k else 0}')
            if k + 1 < NK: rd(k + 1, t)
        for _ in range(2):
            if hissued < NK and hissued <= k + HW: hload(hissued); hissued += 1
    A.stamp(5)
    for t in range(4):
        for gp in range(2):
            d = AF + (t * 2 + gp) * 4
            for i in range(4): A(f'v_cvt_pk_bf16_f32 {v(d+i)}, {v(ACC+16*t+8*gp+2*i)}, {v(ACC+16*t+8*gp+2*i+1)}')
            A(f'buffer_store_dwordx4 {v(d,4)}, {v(so)}, s[16:19], s30 offen offset:{t*256+gp*128} sc1')
    A.stamp(6)
    A(f's_mul_i32 s58, s25, 5\ns_add_u32 s58, s58, s10\ns_lshl_b32 s58, s58, 3\ns_add_u32 s58, s58, s32\ns_add_u32 s58, s58, {L.FL_Q}')
    A('s_waitcnt vmcnt(0)')
    A.flush(1, 7)
    A.label('b_done')
    A('s_waitcnt vmcnt(0)\ns_barrier')
    put_flag(A, 58)
    return V.hi

def gen_k2(A):
    n1 = gen_fft(A)
    n2 = gen_gemm(A)
    return max(n1, n2)
```

```python
import numpy as np
from model import bf16
CP = 328
GP = CP * 16
OFF_H = 1 << 16;            SZ_H = 64 * 108 * 1024
OFF_A = 8 << 20;      SZ_A = 512 * GP
OFF_WT = 12 << 20;    WTP = 648 * 16; SZ_WT = 256 * WTP + 128
OFF_P = 16 << 20
OFF_PART = 20 << 20;  SZ_PART1 = 512 * 5120; NPART = 2; SZ_PART = NPART * SZ_PART1
OFF_ST = 15 << 20;    SZ_ST = 256 * 128
OFF_FL = 0; SZ_FL = 8192
FL_EP = 0; FL_H = 128; FL_A = FL_H + 2048; FL_P = FL_A + 256; FL_Q = FL_P + 1024
WS_USED = 32 << 20

def to_u16(x): return (bf16(x).view(np.uint32) >> 16).astype(np.uint16)
def from_u16(u): return (u.astype(np.uint32) << 16).view(np.float32)

def pack_pieces(Z, rowidx):
    out = np.zeros((256, 2, CP, 4, 2), np.uint16)
    for hf in range(2):
        z = Z[hf][rowidx]
        out[:, hf, :321, :, 0] = to_u16(z.real).transpose(0, 2, 1)
        out[:, hf, :321, :, 1] = to_u16(z.imag).transpose(0, 2, 1)
    return out
def unpack_pieces(u, rowidx):
    u = u.reshape(256, 2, CP, 4, 2)
    Z = np.zeros((2, 1024, 321), complex)
    for hf in range(2):
        z = from_u16(u[:, hf, :321, :, 0]).astype(np.float64) + 1j * from_u16(u[:, hf, :321, :, 1])
        Z[hf][rowidx] = z.transpose(0, 2, 1)
    return Z
G = np.arange(256)[:, None]; R4 = np.arange(4)[None]
IDX_A = 32 * (4 * (G >> 5) + R4) + (G & 31)
IDX_P = 4 * G + R4
def pack_wt(wr, wi):
    W = wr.astype(np.float64) + 1j * wi
    p = pack_pieces(np.stack([W[0::2], W[1::2]]), IDX_A)[:, :, :321].reshape(256, 642, 4, 2)
    out = np.zeros((256, 648, 4, 2), np.uint16); out[:, :642] = p
    return out
def h_index():
    st = np.arange(64)[:, None, None, None]; ch = np.arange(108)[None, :, None, None]
    l = np.arange(64)[None, None, :, None]; e = np.arange(8)[None, None, None, :]
    s = 32 * st + (l & 31) + 0 * ch + 0 * e
    f = 16 * ch + 8 * (e >> 2) + 4 * (l >> 5) + (e & 3) + 0 * st
    return s, f
def pack_h(h): s, f = h_index(); return to_u16(h[s, f])
def unpack_h(u):
    s, f = h_index(); h = np.zeros((2048, 1728), np.float32); h[s, f] = from_u16(u.reshape(64, 108, 64, 8)); return h
def pack_part(p):
    return to_u16(p.reshape(512, 4, 80, 8).transpose(0, 2, 1, 3))
def unpack_part(u): return from_u16(u.reshape(512, 80, 4, 8)).transpose(0, 2, 1, 3).reshape(2048, 640)
```

```python
import sys, math
from asmlib import *
import layouts as L

NAME = 'recurrent_scan__spectral_gfnet__dense_activation_gelu__prompt'
XB = 2048 * 640 * 2
LOG2E = 1.4426950408889634

class VA:
    def __init__(self, start=1): self.n = start; self.hi = start
    def __call__(self, c=1, al=None):
        al = al or (1 if c == 1 else 2)
        self.n = (self.n + al - 1) // al * al
        r = self.n; self.n += c; self.hi = max(self.hi, self.n); return r
    def mark(self): return self.n
    def reset(self, m): self.n = m

def srd(A, d, base, off, size):
    if off:
        A(f's_add_u32 {s(d)}, {s(base)}, {off}')
        A(f's_addc_u32 {s(d+1)}, {s(base+1)}, 0')
    else:
        A(f's_mov_b32 {s(d)}, {s(base)}')
        A(f's_mov_b32 {s(d+1)}, {s(base+1)}')
    A(f's_mov_b32 {s(d+2)}, {size}')
    A(f's_mov_b32 {s(d+3)}, 0x00020000')

def header(A, name):
    A(f'.globl {name}\n.p2align 8\n.type {name},@function')
    A.label(name)

def desc(name, nv, ns=102):
    acc = (nv + 3) // 4 * 4
    return f'''.amdhsa_kernel {name}
  .amdhsa_next_free_vgpr {nv}
  .amdhsa_next_free_sgpr {ns}
  .amdhsa_accum_offset {acc}
  .amdhsa_group_segment_fixed_size 0
  .amdhsa_kernarg_size 88
  .amdhsa_user_sgpr_count 2
  .amdhsa_user_sgpr_kernarg_segment_ptr 1
  .amdhsa_system_sgpr_workgroup_id_x 1
  .amdhsa_float_denorm_mode_32 3
.end_amdhsa_kernel
'''

def code_prefetch(A):
    A('s_getpc_b64 s[96:97]')
    A.label('cpf')
    A('s_lshr_b32 s90, s2, 3\ns_lshl_b32 s90, s90, 13')
    A('s_cmp_ge_u32 s90, text_end-text_begin\ns_cbranch_scc1 cpf_done')
    A('v_lshl_add_u32 v250, v0, 4, s90')
    A('v_min_u32 v250, text_end-text_begin-16, v250')
    A('s_sub_u32 s96, s96, cpf-text_begin\ns_subb_u32 s97, s97, 0')
    A('v_mov_b32 v251, s97')
    A('v_add_co_u32 v250, vcc, s96, v250\nv_addc_co_u32 v251, vcc, 0, v251, vcc')
    A('global_load_dwordx4 v[252:255], v[250:251], off')
    A.label('cpf_done')

def unpack(A, dlo, dhi, src):
    A(f'v_lshlrev_b32 {v(dlo)}, 16, {v(src)}')
    A(f'v_and_b32 {v(dhi)}, 0xffff0000, {v(src)}')

def cmul(A, dr, di, ar, ai, br, bi, t):
    A(f'v_mul_f32 {v(t)}, {v(ai)}, {v(bi)}')
    A(f'v_mul_f32 {v(di)}, {v(ai)}, {v(br)}')
    A(f'v_fmac_f32 {v(di)}, {v(ar)}, {v(bi)}')
    A(f'v_fma_f32 {v(dr)}, {v(ar)}, {v(br)}, -{v(t)}')

K3_PQ = 0; K3_G = 23040; K3_CT = 33280; K3_PL = K3_CT + 14336
K3_LDS = K3_PL + 11264
def gen_k3(A):
    header(A, 'k3_kernel')
    V = VA()
    A('s_cmp_ge_u32 s2, 256\ns_cbranch_scc1 k3_end')
    A('s_load_dwordx2 s[4:5], s[0:1], 0\ns_load_dwordx4 s[8:11], s[0:1], 56\ns_load_dwordx2 s[6:7], s[0:1], 80')
    lane, g, j, tp, t0, t1 = V(), V(), V(), V(), V(), V()
    off16 = V(); c16 = V(); pt = V(8, 4); bb = V(4, 4); xx = V(4, 4)
    A(f'v_lshrrev_b32 {v(t0)}, 6, v0')
    A(f'v_and_b32 {v(lane)}, 63, v0')
    A(f'v_readfirstlane_b32 s3, {v(t0)}')
    A(f'v_lshlrev_b32 {v(t1)}, 4, v0')
    A('s_cmp_ge_u32 s3, 5\ns_cselect_b32 s32, 1, 0')
    A('s_mul_i32 s33, s32, 320')
    A(f'v_subrev_u32 {v(tp)}, s33, v0')
    A(f'v_lshlrev_b32 {v(off16)}, 4, {v(tp)}')
    A(f'v_lshrrev_b32 {v(c16)}, 2, {v(tp)}\nv_lshlrev_b32 {v(c16)}, 4, {v(c16)}')
    A('s_lshl_b32 s36, s32, 8\ns_add_u32 s36, s36, s2\ns_mul_i32 s36, s36, 5120')
    A(f's_add_u32 s38, s36, {L.SZ_PART1}\ns_mul_i32 s34, s2, {2*L.GP}')
    A(f's_lshl_b32 s35, s3, 10\ns_add_u32 m0, s35, {K3_PL}')
    A.stamp(0)
    A('s_waitcnt lgkmcnt(0)')
    srd(A, 20, 6, L.OFF_P, L.SZ_A); srd(A, 24, 6, L.OFF_PART, L.SZ_PART)
    A(f'buffer_load_dwordx4 {v(t1)}, s[20:23], s34 offen lds')
    A('s_cmp_lg_u32 s3, 9\ns_cbranch_scc1 k3_nop2')
    A('s_mov_b64 exec, 0xffff')
    A(f'buffer_load_dwordx4 {v(t1)}, s[20:23], s34 offen offset:1024 lds')
    A('s_mov_b64 exec, -1')
    A.label('k3_nop2')
    A('s_barrier')
    A(f'buffer_load_dwordx4 {v(pt,4)}, {v(off16)}, s[24:27], s36 offen')
    A(f'buffer_load_dwordx4 {v(pt+4,4)}, {v(off16)}, s[24:27], s38 offen')
    srd(A, 28, 8, 0, 1280); srd(A, 12, 4, 0, XB)
    A(f'buffer_load_dwordx4 {v(bb,4)}, {v(c16)}, s[28:31], 0 offen')
    A(f'buffer_load_dwordx4 {v(xx,4)}, {v(off16)}, s[12:15], s36 offen')
    srd(A, 16, 10, 0, XB)
    A(f'v_lshrrev_b32 {v(g)}, 4, {v(lane)}\nv_and_b32 {v(j)}, 15, v0')
    l16 = V()
    A(f'v_lshlrev_b32 {v(l16)}, 4, {v(lane)}\nv_add_u32 {v(l16)}, {K3_CT}, {v(l16)}')
    A('s_cmp_ge_u32 s3, 8\ns_cbranch_scc1 k3_g')
    mk = V.mark()
    st, th = V(), V(); cs = V(4, 4); sn = V(4, 4); o1 = V(4, 4); o2 = V(4, 4)
    A('s_and_b32 s40, s3, 1\ns_lshl_b32 s40, s40, 4\ns_lshr_b32 s41, s3, 1')
    A(f's_cmp_eq_u32 s41, 1\ns_cselect_b32 s42, 16, 0\ns_cselect_b32 s43, 0x80000000, 0')
    A(f's_mov_b32 s44, {fh(1/32)}\ns_cmp_eq_u32 s41, 2\ns_cselect_b32 s44, {fh(1/640)}, s44\ns_cmp_eq_u32 s41, 3\ns_cselect_b32 s44, {fh(1/20)}, s44')
    A(f'v_add_u32 {v(t0)}, s40, {v(j)}\nv_cvt_f32_u32 {v(st)}, {v(t0)}\nv_mul_f32 {v(st)}, s44, {v(st)}')
    A(f'v_lshl_add_u32 {v(t0)}, {v(g)}, 2, s42\nv_cvt_f32_u32 {v(th)}, {v(t0)}\nv_mul_f32 {v(th)}, {v(th)}, {v(st)}')
    for c in range(4):
        A(f'v_cos_f32 {v(cs+c)}, {v(th)}\nv_sin_f32 {v(sn+c)}, {v(th)}')
        if c < 3: A(f'v_add_f32 {v(th)}, {v(th)}, {v(st)}')
    A(f's_lshl_b32 s45, s3, 11\nv_add_u32 {v(t1)}, s45, {v(l16)}')
    A('s_cmp_eq_u32 s41, 2\ns_cbranch_scc1 k3_ctw')
    for c in range(4):
        A(f'v_cvt_pk_bf16_f32 {v(o1+c)}, {v(cs+c)}, -{v(sn+c)}\nv_cvt_pk_bf16_f32 {v(o2+c)}, {v(sn+c)}, {v(cs+c)}')
    for c in range(4): A(f'v_xor_b32 {v(o1+c)}, s43, {v(o1+c)}\nv_xor_b32 {v(o2+c)}, s43, {v(o2+c)}')
    A('s_cmp_eq_u32 s3, 7\ns_cselect_b32 s45, 1024, 0')
    A(f'v_subrev_u32 {v(t1)}, s45, {v(t1)}')
    A(f'ds_write_b128 {v(t1)}, {v(o1,4)}')
    A('s_cmp_ge_u32 s3, 4\ns_cbranch_scc1 k3_g')
    A(f'ds_write_b128 {v(t1)}, {v(o2,4)} offset:1024')
    A('s_branch k3_g')
    A.label('k3_ctw')
    for r in range(4):
        A(f'v_add_u32 {v(th)}, {r}, {v(t0)}')
        A(f'v_cmp_gt_u32 vcc, 10, {v(th)}')
        A(f'v_cndmask_b32 {v(st)}, 0, 2.0, vcc')
        if r in (0, 2):
            A(f'v_cmp_eq_u32 vcc, {5*r}, {v(th)}')
            A(f'v_cndmask_b32 {v(st)}, {v(st)}, 1.0, vcc')
        A(f'v_mul_f32 {v(cs+r)}, {v(cs+r)}, {v(st)}\nv_mul_f32 {v(sn+r)}, {v(sn+r)}, {v(st)}')
    A(f'ds_write_b128 {v(t1)}, {v(cs,4)}\nds_write_b128 {v(t1)}, {v(sn,4)} offset:1024')
    V.reset(mk)
    A.label('k3_g')
    gaddr, pw, ra, rg = V(), V(), V(), V(); a0 = V(4)
    kk = V(2, 2); y = V(8, 4); gp = V(4, 4); tt = V(32, 4); t2_ = tt + 8
    A(f'v_and_b32 {v(t1)}, 3, {v(tp)}')
    A(f'v_mul_u32_u24 {v(t1)}, 1280, {v(t1)}')
    A(f's_mul_i32 s40, s32, 5120\ns_add_u32 s40, s40, {K3_G}')
    A(f'v_add3_u32 {v(gaddr)}, {v(c16)}, {v(t1)}, s40')
    A(f'v_min_u32 {v(t0)}, 10, {v(j)}\nv_lshlrev_b32 {v(t0)}, 4, {v(t0)}')
    A(f'v_mul_u32_u24 {v(t1)}, 1280, {v(g)}\nv_add_u32 {v(t0)}, {v(t0)}, {v(t1)}')
    A(f's_and_b32 s41, s3, 3\ns_lshl_b32 s41, s41, 2\ns_add_u32 s41, s41, {K3_PL}\ns_add_u32 s42, s41, 4160')
    A(f'v_add_u32 {v(a0)}, s41, {v(t0)}\nv_sub_u32 {v(a0+2)}, s42, {v(t0)}')
    A(f'v_add_u32 {v(a0+1)}, {L.GP}, {v(a0)}\nv_add_u32 {v(a0+3)}, {L.GP}, {v(a0+2)}')
    A(f'v_mul_u32_u24 {v(pw)}, 144, {v(j)}\nv_lshl_add_u32 {v(pw)}, {v(g)}, 4, {v(pw)}')
    A(f's_mul_i32 s41, s3, 2880\nv_add_u32 {v(pw)}, s41, {v(pw)}')
    A(f'v_lshrrev_b32 {v(t0)}, 2, v0\nv_lshlrev_b32 {v(t0)}, 4, {v(t0)}\nv_lshl_add_u32 {v(ra)}, v0, 5, {v(t0)}')
    A(f'v_add_u32 {v(rg)}, s40, {v(off16)}')
    SC = 2048.0 * 640.0
    A(f'v_mov_b32 {v(kk)}, {fh(-LOG2E)}\nv_mov_b32 {v(kk+1)}, {fh(SC)}')
    A(f'v_cmp_gt_u32 s[46:47], 4, {v(j)}')
    A('s_waitcnt lgkmcnt(0)\ns_barrier')
    CB = (V.mark() + 3) // 4 * 4 + 16
    A('s_cmp_ge_u32 s3, 4\ns_cbranch_scc1 k3_g1')
    for n in range(14): A(f'ds_read_b128 {v(CB+4*n,4)}, {v(l16)} offset:{1024*n}')
    A.label('k3_g1')
    A.stamp(1)
    A('s_waitcnt vmcnt(4) lgkmcnt(0)\ns_barrier')
    A.stamp(2)
    pd = V(16, 4); B1 = V(32, 4); TW = V(16, 4); B2 = V(8, 4)
    A('s_cmp_ge_u32 s3, 4\ns_cbranch_scc1 k3_g2')
    def b1(T, q, part): return B1 + ((q * 2 + T) * 2 + part) * 4
    D = tt; U = pd; E = B1; tq = gp
    for q in range(2):
        for hf in range(2):
            a_ = v(a0 + 2 * q + hf); o = (0, 80, 160, 240) if q == 0 else (240, 160, 80, 0)
            A(f'ds_read2_b32 {v(pd+8*hf+4*q,2)}, {a_} offset0:{o[0]} offset1:{o[1]}\nds_read2_b32 {v(pd+8*hf+4*q+2,2)}, {a_} offset0:{o[2]} offset1:{o[3]}')
    for q in range(2):
        for hf in range(2):
            A(f's_waitcnt lgkmcnt({6-4*q-2*hf})')
            for T in range(2):
                for part in range(2):
                    d = D + 16 * hf + (T * 2 + part) * 4
                    A(f'v_mfma_f32_16x16x32_bf16 {v(d,4)}, {v(pd+8*hf+4*q,4)}, {v(b1(T,q,part),4)}, {v(d,4) if q else 0}')
    for i in range(0, 16, 2):
        A(f'v_pk_add_f32 {v(y+(i&6),2)}, {v(D+i,2)}, {v(D+16+i,2)}')
        A(f'v_pk_add_f32 {v(D+16+i,2)}, {v(D+i,2)}, {v(D+16+i,2)} neg_lo:[0,1] neg_hi:[0,1]')
        if (i & 6) == 6:
            T = i >> 3
            for hb, re in ((0, y), (1, D + 16 + 8 * T)):
                im = re + 4; c_ = TW + 8 * T; s_ = c_ + 4
                for r in (0, 2): A(f'v_pk_mul_f32 {v(tq+r,2)}, {v(im+r,2)}, {v(s_+r,2)}')
                for r in (0, 2): A(f'v_pk_mul_f32 {v(im+r,2)}, {v(im+r,2)}, {v(c_+r,2)}')
                for r in (0, 2): A(f'v_pk_fma_f32 {v(tq+r,2)}, {v(re+r,2)}, {v(c_+r,2)}, {v(tq+r,2)} neg_lo:[0,0,1] neg_hi:[0,0,1]')
                for r in (0, 2): A(f'v_pk_fma_f32 {v(im+r,2)}, {v(re+r,2)}, {v(s_+r,2)}, {v(im+r,2)}')
                for r in range(4): A(f'v_cvt_pk_bf16_f32 {v(U+8*hb+4*T+r)}, {v(tq+r)}, {v(im+r)}')
    for T1 in range(2):
        for hb in range(2):
            for T in range(2):
                A(f'v_mfma_f32_16x16x32_bf16 {v(E+((T1*2+hb)*2+T)*4,4)}, {v(U+8*hb+4*T,4)}, {v(B2+4*T1,4)}, 0')
    for T1 in range(2):
        if T1: A('s_mov_b64 exec, s[46:47]')
        for hb in range(2):
            for T in range(2): A(f'ds_write_b128 {v(pw)}, {v(E+((T1*2+hb)*2+T)*4,4)} offset:{11520*hb+2304*T1+64*T}')
    A('s_mov_b64 exec, -1')
    A.label('k3_g2')
    A.stamp(3)
    A('s_waitcnt vmcnt(1)')
    A.stamp(4)
    for i in range(4):
        unpack(A, y + 2 * i, y + 2 * i + 1, pt + i); unpack(A, tt + 2 * i, tt + 2 * i + 1, pt + 4 + i); unpack(A, t2_ + 2 * i, t2_ + 2 * i + 1, bb + i)
    for i in range(4): A(f'v_pk_add_f32 {v(y+2*i,2)}, {v(y+2*i,2)}, {v(tt+2*i,2)}')
    for i in range(4): A(f'v_pk_add_f32 {v(y+2*i,2)}, {v(y+2*i,2)}, {v(t2_+2*i,2)}')
    for i in range(4): A(f'v_pk_mul_f32 {v(tt+2*i,2)}, {v(y+2*i,2)}, {v(kk,2)} op_sel_hi:[1,0]')
    for i in range(8): A(f'v_exp_f32 {v(tt+i)}, {v(tt+i)}')
    for i in range(4): A(f'v_pk_fma_f32 {v(tt+2*i,2)}, {v(tt+2*i,2)}, {v(kk,2)}, {v(kk,2)} op_sel:[0,1,1] op_sel_hi:[1,1,1]')
    for i in range(8): A(f'v_rcp_f32 {v(tt+i)}, {v(tt+i)}')
    for i in range(4): A(f'v_pk_mul_f32 {v(y+2*i,2)}, {v(y+2*i,2)}, {v(tt+2*i,2)}')
    for i in range(4): A(f'v_cvt_pk_bf16_f32 {v(gp+i)}, {v(y+2*i)}, {v(y+2*i+1)}')
    A(f'ds_write_b128 {v(gaddr)}, {v(gp,4)}')
    A('s_waitcnt vmcnt(0)')
    for i in range(4): unpack(A, y + 2 * i, y + 2 * i + 1, xx + i)
    A.stamp(5)
    A('s_waitcnt lgkmcnt(0)\ns_barrier')
    A.stamp(6)
    pp = pt
    A(f'ds_read_b128 {v(gp,4)}, {v(rg)}')
    A(f'ds_read_b128 {v(pp,4)}, {v(ra)}\nds_read_b128 {v(pp+4,4)}, {v(ra)} offset:16')
    A('s_waitcnt lgkmcnt(2)')
    for i in range(4): unpack(A, tt + 2 * i, tt + 2 * i + 1, gp + i)
    A('s_waitcnt lgkmcnt(0)')
    for i in range(4): A(f'v_pk_fma_f32 {v(y+2*i,2)}, {v(pp+2*i,2)}, {v(tt+2*i,2)}, {v(y+2*i,2)}')
    for i in range(4): A(f'v_cvt_pk_bf16_f32 {v(gp+i)}, {v(y+2*i)}, {v(y+2*i+1)}')
    A(f'buffer_store_dwordx4 {v(gp,4)}, {v(off16)}, s[16:19], s36 offen sc1')
    A.stamp(7)
    A.end(2, 8)
    A.label('k3_end')
    A('s_endpgm')
    assert B2 == TW + 16 and CB == B1
    return V.hi

def gen_summ(A):
    header(A, 'summ_kernel')
    A('s_cmp_ge_u32 s2, 1\ns_cbranch_scc1 summ_end')
    A('s_load_dwordx4 s[4:7], s[0:1], 72\ns_waitcnt lgkmcnt(0)')
    srd(A, 8, 6, 40 << 20, 1 << 24); srd(A, 12, 4, 0, 256)
    A('v_lshlrev_b32 v1, 10, v0\nv_mov_b32 v9, 0')
    for k, (lim, e0, e1, tot) in enumerate(((224, 8, 5, 256), (160, 7, 5, 242), (256, 8, 8, 256))):
        A(f'v_cmp_gt_u32 vcc, {lim}, v0\nv_mov_b32 v2, {4*e1}\nv_mov_b32 v3, {4*e0}\nv_cndmask_b32 v2, v2, v3, vcc\nv_add_u32 v2, v2, v1')
        A(f's_mov_b32 s16, {k*4096*64}')
        A('buffer_load_dword v4, v1, s[8:11], s16 offen\nbuffer_load_dword v5, v2, s[8:11], s16 offen\ns_waitcnt vmcnt(0)')
        A('v_not_b32 v4, v4')
        A(f'v_cmp_gt_u32 vcc, {tot}, v0\ns_and_saveexec_b64 s[18:19], vcc')
        A(f'buffer_atomic_umax v4, v9, s[12:15], 0 offen offset:{8*k}\nbuffer_atomic_umax v5, v9, s[12:15], 0 offen offset:{8*k+4}')
        A('s_mov_b64 exec, s[18:19]\ns_waitcnt vmcnt(0)')
    A.label('summ_end')
    A('s_endpgm')
    return 16

def main(out, kernels):
    A = Asm()
    if 'prof' in kernels: A.prof = True
    launches = []; descs = []
    for k in kernels:
        if k == 'k1':
            from gen_k1 import gen_k1, K1_LDS
            nv = gen_k1(A); assert nv <= 250; nv = 256; launches.append(f'; @launch kernel=k1_kernel grid=(256,1,1) block=(512,1,1) lds={K1_LDS}'); descs.append(desc('k1_kernel', nv))
        if k == 'k2':
            from gen_k2 import gen_k2, K2_LDS
            nv = gen_k2(A); launches.append(f'; @launch kernel=k2_kernel grid=(256,1,1) block=(512,1,1) lds={K2_LDS}'); descs.append(desc('k2_kernel', nv))
        if k == 'k3':
            nv = gen_k3(A); launches.append(f'; @launch kernel=k3_kernel grid=(256,1,1) block=(640,1,1) lds={K3_LDS}'); descs.append(desc('k3_kernel', nv))
        if k == 'summ':
            nv = gen_summ(A); launches.append('; @launch kernel=summ_kernel grid=(1,1,1) block=(256,1,1) lds=0'); descs.append(desc('summ_kernel', nv))
        if k != 'prof': print(k, 'vgprs', nv, file=sys.stderr)
    body = A.finalize()
    txt = '; generated by dev/gen.py (own generator)\n' + '\n'.join(launches) + '\n'
    txt += '.amdgcn_target "amdgcn-amd-amdhsa--gfx950"\n.text\n.p2align 8\ntext_begin:\n' + body + '.p2align 8\ntext_end:\n'
    txt += '.section .rodata,"a"\n' + ''.join('.p2align 6\n' + d for d in descs)
    open(out, 'w').write(txt)

if __name__ == '__main__':
    main(sys.argv[1], sys.argv[2:])
```

```python
from asmlib import *
import layouts as L
from gen import VA, srd, header, unpack, XB

NST = 9; RING = 6; STB = 24576; KS = 6
K2_LDS = RING * STB
NG = 160

def pk_cmul_conj(A, re, im, c, sn, t):
    A(f'v_pk_mul_f32 {v(t,2)}, {v(re,2)}, {v(sn,2)}')
    A(f'v_pk_mul_f32 {v(re,2)}, {v(re,2)}, {v(c,2)}')
    A(f'v_pk_fma_f32 {v(re,2)}, {v(im,2)}, {v(sn,2)}, {v(re,2)}')
    A(f'v_pk_fma_f32 {v(im,2)}, {v(im,2)}, {v(c,2)}, {v(t,2)} neg_lo:[0,0,1] neg_hi:[0,0,1]')

def gen_fft(A):
    V = VA()
    A.label('k2_fft')
    A(f's_sub_u32 s4, s2, {NG}')
    A('s_cmp_ge_u32 s4, 82\ns_cbranch_scc1 k2_end')
    A('s_bfe_u32 s24, s4, 0x10003\ns_and_b32 s25, s4, 7\ns_mul_i32 s25, s25, 5\ns_lshr_b32 s26, s4, 4\ns_add_u32 s25, s25, s26')
    A('s_and_b32 s26, s4, 1\ns_cmp_ge_u32 s4, 80\ns_cselect_b32 s24, s26, s24\ns_cselect_b32 s25, 40, s25')
    lane, t0, t1, t2, vo, vw = V(), V(), V(), V(), V(), V()
    A(f'v_and_b32 {v(lane)}, 63, v0')
    A(f'v_lshrrev_b32 {v(t0)}, 3, {v(lane)}')
    A(f'v_bfe_u32 {v(t1)}, v0, 4, 3')
    A(f'v_and_b32 {v(t2)}, 7, v0')
    A(f'v_xor_b32 {v(t1)}, {v(t1)}, {v(t2)}')
    A(f'v_lshlrev_b32 {v(t1)}, 4, {v(t1)}')
    A(f'v_mad_u32_u24 {v(vo)}, {v(t0)}, s10, {v(t1)}')
    A(f'v_mul_u32_u24 {v(vw)}, 1284, v0')
    A(f's_lshl_b32 s28, s25, 7')
    A(f's_lshl_b32 s27, s3, 4\ns_add_u32 s27, s27, s24\ns_mul_i32 s27, s27, {L.GP}\ns_add_u32 s27, s27, s28')
    A(f's_mul_i32 s37, s24, 642\ns_lshl_b32 s38, s25, 4\ns_min_u32 s38, s38, 626\ns_add_u32 s37, s37, s38\ns_add_u32 s38, s37, {512*1284}')
    A('s_lshl_b32 s29, s3, 10')
    A('s_waitcnt lgkmcnt(0)')
    srd(A, 12, 6, L.OFF_A, L.SZ_A); srd(A, 16, 44, 0, 2048 * 642); srd(A, 48, 46, 0, 2048 * 642)
    A('s_mov_b32 s42, s27')
    for i in range(4):
        A(f's_add_u32 m0, s29, {8192*i}')
        if i: A(f's_add_u32 s27, s27, {128*L.GP}')
        A(f'buffer_load_dwordx4 {v(vo)}, s[12:15], s27 offen lds')
    WR = 160
    def wload(n):
        b, pl = n >> 1, n & 1
        A(f'buffer_load_dwordx4 {v(WR+8*b+4*pl,4)}, {v(vw)}, s[{16+32*pl}:{19+32*pl}], s{37+b} offen')
    srd(A, 20, 6, L.OFF_P, L.SZ_A)
    j, h = V(), V()
    A(f'v_and_b32 {v(j)}, 31, v0')
    A(f'v_bfe_u32 {v(h)}, v0, 5, 1')
    fj, fu, sa, pa, sb, pb = V(), V(), V(), V(), V(), V()
    A(f'v_cvt_f32_u32 {v(fj)}, {v(j)}')
    A(f'v_bfe_u32 {v(t0)}, v0, 5, 3\nv_lshlrev_b32 {v(t0)}, 2, {v(t0)}')
    A(f'v_cvt_f32_u32 {v(fu)}, {v(t0)}')
    A(f's_cmp_eq_u32 s24, 0\ns_cselect_b32 s30, 0, {fh(1/64)}')
    A('s_cmp_ge_u32 s3, 4\ns_cselect_b32 s31, 0, s30\ns_cselect_b32 s32, s30, 0\ns_cselect_b64 vcc, -1, 0')
    A(f'v_mul_f32 {v(sb)}, {fh(1/32)}, {v(fj)}')
    A(f'v_add_f32 {v(sa)}, s31, {v(sb)}')
    A(f'v_mul_f32 {v(pa)}, {v(sa)}, {v(fu)}')
    A(f'v_fmac_f32 {v(pa)}, s32, {v(fj)}')
    A(f'v_mul_f32 {v(pb)}, {v(sb)}, {v(fu)}')
    FA = V(32, 4); FB = V(32, 4); FT = V(32, 4); TB = V(32, 4)
    X = V(16, 4); Wd = V(16, 4); AC = V(64, 4); tp = V(4, 2); wu = V(4)
    assert Wd == WR, Wd
    CT = 65536
    l16 = V()
    A(f'v_lshlrev_b32 {v(l16)}, 4, {v(lane)}\nv_add_u32 {v(l16)}, {CT}, {v(l16)}')
    for r in range(4):
        an, bn = AC + 20 + r, AC + 40 + r
        if r: A(f'v_fmamk_f32 {v(an)}, {v(sa)}, {fh(float(r))}, {v(pa)}\nv_fmamk_f32 {v(bn)}, {v(sb)}, {fh(float(r))}, {v(pb)}')
        else: an, bn = pa, pb
        A(f'v_cos_f32 {v(AC+24+r)}, {v(an)}\nv_sin_f32 {v(AC+28+r)}, {v(an)}')
        A(f'v_mul_f32 {v(AC+8+r)}, {fh(1/32)}, {v(an)}')
        A(f'v_cos_f32 {v(AC+32+r)}, {v(bn)}\nv_sin_f32 {v(AC+36+r)}, {v(bn)}')
        A(f'v_sin_f32 {v(AC+12+r)}, {v(AC+8+r)}\nv_cos_f32 {v(AC+8+r)}, {v(AC+8+r)}')
        A(f'v_cvt_pk_bf16_f32 {v(AC+r)}, {v(AC+24+r)}, {v(AC+28+r)}')
        A(f'v_cvt_pk_bf16_f32 {v(AC+4+r)}, -{v(AC+28+r)}, {v(AC+24+r)}')
        A(f'v_cvt_pk_bf16_f32 {v(AC+16+r)}, {v(AC+32+r)}, {v(AC+36+r)}')
        A(f'v_cvt_pk_bf16_f32 {v(AC+44+r)}, -{v(AC+36+r)}, {v(AC+32+r)}')
        A(f'v_cndmask_b32 {v(AC+16+r)}, {v(AC+16+r)}, {v(AC+44+r)}, vcc')
    A('s_lshr_b32 s39, s3, 2\ns_mul_i32 s39, s39, 12288\ns_add_u32 s39, s39, s29')
    A(f'v_add_u32 {v(t0)}, s39, {v(l16)}\nv_add_u32 {v(t2)}, s29, {v(l16)}')
    for m in range(4): A(f'ds_write_b128 {v(t0)}, {v(AC+4*m,4)} offset:{4096*m}')
    A(f'ds_write_b128 {v(t2)}, {v(AC+16,4)} offset:32768')
    ra, so = fj, fu
    A(f'v_bfe_u32 {v(t0)}, v0, 1, 3\nv_xor_b32 {v(t0)}, s3, {v(t0)}\nv_lshlrev_b32 {v(t0)}, 4, {v(t0)}')
    A(f'v_lshl_add_u32 {v(ra)}, {v(lane)}, 7, {v(t0)}')
    A(f'v_and_b32 {v(t0)}, 1, v0\nv_lshlrev_b32 {v(t0)}, 2, {v(t0)}\nv_xor_b32 {v(t0)}, s3, {v(t0)}\nv_lshlrev_b32 {v(t0)}, 4, {v(t0)}')
    A(f'v_lshl_add_u32 {v(so)}, {v(j)}, 10, {v(t0)}')
    A(f'v_lshl_add_u32 {v(so)}, {v(h)}, 7, {v(so)}')
    A('s_mov_b32 s41, 0xffff0000')
    A('s_waitcnt lgkmcnt(0)\ns_barrier')
    def tread(part):
        for q in range(4):
            A(f'ds_read_b128 {v(TB+4*q,4)}, {v(l16)} offset:{16384*part+8192+1024*q}')
            A(f'ds_read_b128 {v(TB+16+4*q,4)}, {v(l16)} offset:{16384*part+12288+1024*q}')
    for q in range(8): A(f'ds_read_b128 {v(FA+4*q,4)}, {v(l16)} offset:{1024*q}')
    tread(0)
    for q in range(8): A(f'ds_read_b128 {v(FB+4*q,4)}, {v(l16)} offset:{32768+1024*q}')
    for q in range(8): A(f'ds_read_b128 {v(FT+4*q,4)}, {v(l16)} offset:{16384+1024*q}')
    A.stamp(1)
    wsc = sa
    A(f'v_lshrrev_b32 {v(t0)}, 7, v0\nv_lshlrev_b32 {v(wsc)}, 12, {v(t0)}')
    A(f'v_lshl_add_u32 {v(wsc)}, {v(j)}, 7, {v(wsc)}')
    A(f'v_bfe_u32 {v(t0)}, v0, 5, 2\nv_lshl_add_u32 {v(wsc)}, {v(t0)}, 2, {v(wsc)}')
    A(f'v_bfe_u32 {v(t0)}, v0, 1, 3\nv_lshl_add_u32 {v(wsc)}, {v(t0)}, 4, {v(wsc)}')
    A(f's_cmp_eq_u32 s25, 40\ns_cselect_b32 s46, 112, 0\nv_xor_b32 {v(wsc)}, s46, {v(wsc)}')
    A('s_mov_b32 s46, 0x05040100\ns_mov_b32 s47, 0x07060302')
    wload(0)
    A('s_waitcnt vmcnt(1) lgkmcnt(0)')
    A.stamp(2)
    A('s_barrier')
    A.stamp(3)
    for q in range(4): A(f'ds_read_b128 {v(X+4*q,4)}, {v(ra)} offset:{q*8192}')
    def mm(M, data_is_A, q, o):
        for D, off in ((AC + o, 0), (AC + o + 16, 16)):
            a_, b_ = (v(X+4*q,4), v(M+off+4*q,4)) if data_is_A else (v(M+off+4*q,4), v(X+4*q,4))
            A(f'v_mfma_f32_32x32x16_bf16 {v(D,16)}, {a_}, {b_}, {v(D,16) if q else 0}')
    def twq(o, q):
        K = range(4 * q, 4 * q + 4)
        for k in K: A(f'v_mul_f32 {v(tp+(k&3))}, {v(AC+o+k)}, {v(TB+k)}')
        for k in K: A(f'v_mul_f32 {v(AC+o+k)}, {v(AC+o+k)}, {v(TB+16+k)}')
        for k in K: A(f'v_fmac_f32 {v(tp+(k&3))}, {v(AC+o+16+k)}, {v(TB+16+k)}')
        for k in K: A(f'v_fma_f32 {v(AC+o+16+k)}, {v(AC+o+16+k)}, {v(TB+k)}, -{v(AC+o+k)}')
        for k in K: A(f'v_cvt_pk_bf16_f32 {v(X+k)}, {v(tp+(k&3))}, {v(AC+o+16+k)}')
    for q in range(4):
        A(f's_waitcnt lgkmcnt({3-q})')
        mm(FA, True, q, 0)
    wload(1)
    for q in range(4):
        twq(0, q); mm(FB, False, q, 32)
        if q in (0, 2): wload(2 + q // 2)
    A('s_waitcnt vmcnt(0)')
    for c in range(8):
        if c: A(f'v_xor_b32 {v(TB+16+c)}, {16*c}, {v(wsc)}')
        for b in range(2):
            A(f'v_perm_b32 {v(TB+2*c+b)}, {v(WR+8*b+4+(c>>1))}, {v(WR+8*b+(c>>1))}, s{46+(c&1)}')
        A(f'ds_write2st64_b32 {v(TB+16+c if c else wsc)}, {v(TB+2*c)}, {v(TB+2*c+1)} offset0:128 offset1:192')
    A('s_waitcnt lgkmcnt(0)\ns_barrier')
    for q in range(4): A(f'ds_read_b128 {v(Wd+4*q,4)}, {v(ra)} offset:{32768+q*8192}')
    tread(1)
    A('s_waitcnt lgkmcnt(8)')
    for q in range(4):
        K = range(4 * q, 4 * q + 4)
        for k in K: A(f'v_lshlrev_b32 {v(wu+(k&3))}, 16, {v(Wd+k)}')
        for k in K: A(f'v_and_b32 {v(Wd+k)}, s41, {v(Wd+k)}')
        for k in K: A(f'v_mul_f32 {v(tp+(k&3))}, {v(AC+48+k)}, {v(Wd+k)}')
        for k in K: A(f'v_mul_f32 {v(AC+48+k)}, {v(AC+48+k)}, {v(wu+(k&3))}')
        for k in K: A(f'v_fma_f32 {v(tp+(k&3))}, {v(AC+32+k)}, {v(wu+(k&3))}, -{v(tp+(k&3))}')
        for k in K: A(f'v_fmac_f32 {v(AC+48+k)}, {v(AC+32+k)}, {v(Wd+k)}')
        for k in K: A(f'v_cvt_pk_bf16_f32 {v(X+k)}, {v(tp+(k&3))}, -{v(AC+48+k)}')
        mm(FB, True, q, 0)
    A('s_waitcnt lgkmcnt(0)')
    for q in range(4): twq(0, q); mm(FT, True, q, 32)
    for g in range(1, 4): A(f'v_xor_b32 {v(tp+g)}, {16*g}, {v(so)}')
    for g in range(4):
        for r in range(4): A(f'v_cvt_pk_bf16_f32 {v(Wd+4*g+r)}, {v(AC+32+4*g+r)}, -{v(AC+48+4*g+r)}')
        A(f'ds_write_b128 {v(tp+g if g else so)}, {v(Wd+4*g,4)} offset:{256*g}')
    A(f'v_subrev_u32 {v(t2)}, {CT}, {v(t2)}')
    A('s_waitcnt lgkmcnt(0)')
    A.stamp(4)
    A('s_barrier')
    for i in range(4): A(f'ds_read_b128 {v(AC+4*i,4)}, {v(t2)} offset:{8192*i}')
    for i in range(4):
        A(f's_waitcnt lgkmcnt({3-i})')
        A(f'buffer_store_dwordx4 {v(AC+4*i,4)}, {v(vo)}, s[20:23], s42 offen sc1')
        if i < 3: A(f's_add_u32 s42, s42, {128*L.GP}')
    A.end(1, 5)
    return V.hi

def gen_gemm(A):
    V = VA()
    A('s_lshr_b32 s10, s5, 2')
    A('s_lshl_b32 s24, s4, 2\ns_and_b32 s11, s5, 3\ns_add_u32 s24, s24, s11')
    A('s_lshr_b32 s25, s24, 4\ns_and_b32 s26, s24, 15')
    lane = V(); t0 = V(); t1 = V(); t2 = V()
    A(f'v_and_b32 {v(lane)}, 63, v0')
    A('s_cmp_lt_u32 s3, 4\ns_cbranch_scc1 k2_comp')
    mk0 = V.mark()
    lo = V()
    A(f'v_lshrrev_b32 {v(t1)}, 4, {v(lane)}\nv_lshlrev_b32 {v(t0)}, 2, {v(t1)}\nv_and_b32 {v(t2)}, 15, v0')
    A(f'v_xor_b32 {v(t2)}, {v(t2)}, {v(t0)}')
    A(f'v_mul_u32_u24 {v(lo)}, 1280, {v(t1)}')
    A(f'v_lshl_add_u32 {v(lo)}, {v(t2)}, 4, {v(lo)}')
    A('s_sub_u32 s27, s3, 4')
    A(f's_mul_i32 s28, s25, 36\ns_add_u32 s28, s28, s27\ns_mul_i32 s28, s28, {24*1280}\ns_lshl_b32 s29, s10, 8\ns_add_u32 s28, s28, s29')
    A('s_mul_i32 s29, s27, 6144')
    A('s_waitcnt lgkmcnt(0)')
    srd(A, 12, 8, 0, 1728 * 1280)
    def issue(st):
        slot = st % RING
        for i in range(6):
            A(f's_add_u32 m0, s29, {slot*STB+i*1024}')
            if i or st: A(f's_add_u32 s28, s28, {5120 if i else 96*1280-5*5120}')
            else: A('s_nop 0')
            A(f'buffer_load_dwordx4 {v(lo)}, s[12:15], s28 offen lds')
    issue(0)
    A('s_barrier')
    issue(1)
    issued = 2
    A.stamp(1)
    for st in range(NST):
        A(f's_waitcnt vmcnt({6*(issued-st-1)})')
        A('s_barrier')
        for _ in range(2 if st < 2 else 1):
            if issued < NST and issued - RING + 2 <= st: issue(issued); issued += 1
    A('s_getpc_b64 s[96:97]')
    A.label('k2_cpf')
    A('s_add_u32 s96, s96, k3_kernel-k2_cpf\ns_addc_u32 s97, s97, 0')
    A(f'v_and_b32 {v(t0)}, 255, v0\nv_lshlrev_b32 v10, 4, {v(t0)}\nv_min_u32 v10, text_end-k3_kernel-16, v10\nv_mov_b32 v11, s97')
    A('v_add_co_u32 v10, vcc, s96, v10\nv_addc_co_u32 v11, vcc, 0, v11, vcc')
    A('global_load_dwordx4 v[12:15], v[10:11], off')
    srd(A, 16, 52, 0, 1280)
    A(f'v_lshlrev_b32 {v(t0)}, 4, {v(t0)}')
    A(f'buffer_load_dwordx4 v[16:19], {v(t0)}, s[16:19], 0 offen')
    A.end(1, 2)
    A.label('k2_comp')
    V.reset(mk0)
    ho = V()
    A(f'v_lshlrev_b32 {v(ho)}, 4, {v(lane)}')
    A('s_lshl_b32 s27, s26, 2\ns_add_u32 s27, s27, s3')
    A('s_mul_i32 s28, s27, 108\ns_mul_i32 s29, s25, 54\ns_add_u32 s28, s28, s29\ns_lshl_b32 s28, s28, 10')
    A('s_waitcnt lgkmcnt(0)')
    srd(A, 12, 6, L.OFF_H, L.SZ_H)
    HW = 18
    HF = V(4 * HW, 4); ACC = V(64, 4); AF = V(32, 4)
    def hload(k):
        if k % 4 == 0 and k: A('s_add_u32 s28, s28, 4096')
        A(f'buffer_load_dwordx4 {v(HF+4*(k%HW),4)}, {v(ho)}, s[12:15], s28 offen offset:{(k%4)*1024}')
    for k in range(6): hload(k)
    A('s_barrier')
    for k in range(6, 12): hload(k)
    srd(A, 16, 6, L.OFF_PART, L.SZ_PART)
    ab = V(12)
    A(f'v_bfe_u32 {v(t0)}, v0, 2, 2')
    A(f'v_bfe_u32 {v(t1)}, v0, 5, 1')
    A(f'v_lshl_add_u32 {v(t2)}, {v(t1)}, 2, {v(t0)}')
    A(f'v_lshlrev_b32 {v(t2)}, 8, {v(t2)}')
    A(f'v_lshl_add_u32 {v(t2)}, {v(t0)}, 6, {v(t2)}')
    A(f'v_bfe_u32 {v(t0)}, v0, 4, 1\nv_lshl_add_u32 {v(t2)}, {v(t0)}, 5, {v(t2)}')
    A(f'v_and_b32 {v(t0)}, 1, v0\nv_lshl_add_u32 {v(t2)}, {v(t0)}, 4, {v(t2)}')
    A(f'v_bfe_u32 {v(t0)}, v0, 1, 1\nv_lshl_add_u32 {v(ab)}, {v(t0)}, 3, {v(t2)}')
    for t in range(1, 4): A(f'v_xor_b32 {v(ab+t)}, {64*t}, {v(ab)}')
    for sp in range(1, 3):
        for t in range(4): A(f'v_add_u32 {v(ab+4*sp+t)}, {2*STB*sp}, {v(ab+t)}')
    so = V()
    A(f'v_bfe_u32 {v(t0)}, v0, 2, 3')
    A(f'v_mul_u32_u24 {v(so)}, 5120, {v(t0)}')
    A(f'v_and_b32 {v(t0)}, 3, v0')
    A(f'v_lshl_add_u32 {v(so)}, {v(t0)}, 4, {v(so)}')
    A(f'v_lshl_add_u32 {v(so)}, {v(t1)}, 6, {v(so)}')
    A(f's_mul_i32 s30, s25, {L.SZ_PART1}\ns_mul_i32 s31, s27, 40960\ns_add_u32 s30, s30, s31\ns_lshl_b32 s31, s10, 10\ns_add_u32 s30, s30, s31')
    def rd(k, t):
        st, q = divmod(k, KS); slot = st % RING
        for e in range(2):
            A(f'ds_read_b64_tr_b16 {v(AF+(k&1)*16+4*t+2*e,2)}, {v(ab+4*(slot//2)+t)} offset:{(slot%2)*STB+q*4096+e*2048}')
    NK = NST * KS
    A.stamp(1)
    A('s_barrier')
    A.stamp(2)
    for t in range(4): rd(0, t)
    hissued = 12
    for k in range(NK):
        if k in (18, 36): A.stamp(3 if k == 18 else 4)
        if k + 1 < NK and (k + 1) % KS == 0: A('s_barrier')
        A(f's_waitcnt vmcnt({hissued - k - 1})')
        for t in range(4):
            A(f's_waitcnt lgkmcnt({6 if k + 1 < NK else 6 - 2 * t})')
            A(f'v_mfma_f32_32x32x16_bf16 {v(ACC+16*t,16)}, {v(AF+(k&1)*16+4*t,4)}, {v(HF+4*(k%HW),4)}, {v(ACC+16*t,16) if k else 0}')
            if k + 1 < NK: rd(k + 1, t)
        for _ in range(2):
            if hissued < NK and hissued <= k + HW: hload(hissued); hissued += 1
    A.stamp(5)
    for t in range(4):
        for gp in range(2):
            d = AF + (t * 2 + gp) * 4
            for i in range(4): A(f'v_cvt_pk_bf16_f32 {v(d+i)}, {v(ACC+16*t+8*gp+2*i)}, {v(ACC+16*t+8*gp+2*i+1)}')
            A(f'buffer_store_dwordx4 {v(d,4)}, {v(so)}, s[16:19], s30 offen offset:{t*256+gp*128} sc1')
    A.stamp(6)
    A.end(1, 7)
    return V.hi

def gen_k2(A):
    header(A, 'k2_kernel')
    A('s_cmp_ge_u32 s2, 256\ns_cbranch_scc1 k2_end')
    A('s_load_dwordx2 s[6:7], s[0:1], 80\ns_load_dwordx2 s[8:9], s[0:1], 48\ns_load_dwordx4 s[44:47], s[0:1], 8\ns_load_dwordx2 s[52:53], s[0:1], 56')
    A('v_lshrrev_b32 v1, 6, v0')
    A('v_readfirstlane_b32 s3, v1')
    A('s_and_b32 s4, s2, 7\ns_lshr_b32 s5, s2, 3')
    A(f's_mov_b32 s10, {2*L.GP}')
    A.stamp(0)
    A(f's_cmp_ge_u32 s2, {NG}\ns_cbranch_scc1 k2_fft')
    A.label('k2_gemm')
    n2 = gen_gemm(A)
    n1 = gen_fft(A)
    A.label('k2_end')
    A('s_endpgm')
    return max(n1, n2)
```

```python
import sys, math
from asmlib import *
import layouts as L

NAME = 'recurrent_scan__spectral_gfnet__dense_activation_gelu__prompt'
XB = 2048 * 640 * 2
LOG2E = 1.4426950408889634

class VA:
    def __init__(self, start=1): self.n = start; self.hi = start
    def __call__(self, c=1, al=None):
        al = al or (1 if c == 1 else 2)
        self.n = (self.n + al - 1) // al * al
        r = self.n; self.n += c; self.hi = max(self.hi, self.n); return r
    def mark(self): return self.n
    def reset(self, m): self.n = m

def srd(A, d, base, off, size):
    if off:
        A(f's_add_u32 {s(d)}, {s(base)}, {off}')
        A(f's_addc_u32 {s(d+1)}, {s(base+1)}, 0')
    else:
        A(f's_mov_b32 {s(d)}, {s(base)}')
        A(f's_mov_b32 {s(d+1)}, {s(base+1)}')
    A(f's_mov_b32 {s(d+2)}, {size}')
    A(f's_mov_b32 {s(d+3)}, 0x00020000')

def header(A, name):
    A(f'.globl {name}\n.p2align 8\n.type {name},@function')
    A.label(name)

def desc(name, nv, ns=102):
    acc = (nv + 3) // 4 * 4
    return f'''.amdhsa_kernel {name}
  .amdhsa_next_free_vgpr {nv}
  .amdhsa_next_free_sgpr {ns}
  .amdhsa_accum_offset {acc}
  .amdhsa_group_segment_fixed_size 0
  .amdhsa_kernarg_size 88
  .amdhsa_user_sgpr_count 2
  .amdhsa_user_sgpr_kernarg_segment_ptr 1
  .amdhsa_system_sgpr_workgroup_id_x 1
  .amdhsa_float_denorm_mode_32 3
.end_amdhsa_kernel
'''

def code_prefetch(A):
    A('s_getpc_b64 s[96:97]')
    A.label('cpf')
    A('s_lshr_b32 s90, s2, 3\ns_lshl_b32 s90, s90, 13')
    A('s_cmp_ge_u32 s90, text_end-text_begin\ns_cbranch_scc1 cpf_done')
    A('v_lshl_add_u32 v250, v0, 4, s90')
    A('v_min_u32 v250, text_end-text_begin-16, v250')
    A('s_sub_u32 s96, s96, cpf-text_begin\ns_subb_u32 s97, s97, 0')
    A('v_mov_b32 v251, s97')
    A('v_add_co_u32 v250, vcc, s96, v250\nv_addc_co_u32 v251, vcc, 0, v251, vcc')
    A('global_load_dwordx4 v[252:255], v[250:251], off')
    A.label('cpf_done')

_u = [0]
def mkE(A):
    A('s_waitcnt lgkmcnt(0)')
    A('s_add_u32 s92, s92, 1\ns_mul_i32 s93, s92, 0x9E3779B1\ns_xor_b32 s93, s93, 0x5bd1e995')
def ldE(A): A('s_load_dword s92, s[6:7], 0')
def flag_srd(A): srd(A, 60, 6, L.OFF_FL, L.SZ_FL)
def put_flag(A, soff, wave=0):
    _u[0] += 1; lb = f'nofl{_u[0]}'
    A(f's_cmp_lg_u32 s3, {wave}\ns_cbranch_scc1 {lb}')
    flag_srd(A)
    A('v_mov_b32 v246, s92\nv_mov_b32 v247, s93\nv_mov_b32 v248, 0')
    A('s_mov_b64 exec, 1')
    A(f'buffer_store_dwordx2 v[246:247], v248, s[60:63], s{soff} offen sc1')
    A('s_mov_b64 exec, -1')
    A.label(lb)
def poll(A, soff, mask, vt, imm=0, wide=False):
    _u[0] += 1; lb = f'poll{_u[0]}'
    flag_srd(A)
    ad = vt + (4 if wide else 2)
    A(f'v_and_b32 {v(ad)}, 63, v0\nv_lshlrev_b32 {v(ad)}, {4 if wide else 3}, {v(ad)}')
    A('s_mov_b32 s59, 0')
    if isinstance(mask, str): A(f's_mov_b64 exec, {mask}')
    else: A(f's_mov_b32 exec_lo, {mask & 0xffffffff:#x}\ns_mov_b32 exec_hi, {mask >> 32:#x}')
    A.label(lb)
    A(f'buffer_load_dwordx{4 if wide else 2} {v(vt,4 if wide else 2)}, {v(ad)}, s[60:63], {soff} offen offset:{imm} sc1')
    A('s_waitcnt vmcnt(0)')
    A(f'v_cmp_ne_u64 vcc, s[92:93], {v(vt,2)}')
    if wide: A(f'v_cmp_ne_u64 s[56:57], s[92:93], {v(vt+2,2)}\ns_or_b64 vcc, vcc, s[56:57]')
    A(f's_cbranch_vccz {lb}d')
    A(f's_add_u32 s59, s59, 1\ns_cmp_ge_u32 s59, 0x8000\ns_cbranch_scc1 {lb}d')
    A('s_sleep 6')
    A(f's_branch {lb}')
    A.label(lb + 'd')
    A('s_mov_b64 exec, -1')

def unpack(A, dlo, dhi, src):
    A(f'v_lshlrev_b32 {v(dlo)}, 16, {v(src)}')
    A(f'v_and_b32 {v(dhi)}, 0xffff0000, {v(src)}')

def cmul(A, dr, di, ar, ai, br, bi, t):
    A(f'v_mul_f32 {v(t)}, {v(ai)}, {v(bi)}')
    A(f'v_mul_f32 {v(di)}, {v(ai)}, {v(br)}')
    A(f'v_fmac_f32 {v(di)}, {v(ar)}, {v(bi)}')
    A(f'v_fma_f32 {v(dr)}, {v(ar)}, {v(br)}, -{v(t)}')

K3_PQ = 0; K3_G = 23040; K3_CT = 33280; K3_PL = K3_CT + 14336
K3_LDS = K3_PL + 11264
def gen_k3(A):
    V = VA()
    A.label('k3_start')
    A.stamp(0)
    A('s_load_dwordx2 s[4:5], s[0:1], 0\ns_load_dwordx4 s[8:11], s[0:1], 56')
    lane, g, j, tp, t0, t1 = V(), V(), V(), V(), V(), V()
    off16 = V(); c16 = V(); og = V(); pt = V(24, 4); bb = V(12, 4); xx = V(8, 4)
    A(f'v_and_b32 {v(lane)}, 63, v0')
    A('s_cmp_ge_u32 s3, 5\ns_cselect_b32 s32, 1, 0')
    A('s_mul_i32 s33, s32, 320')
    A(f'v_subrev_u32 {v(tp)}, s33, v0')
    A(f'v_lshlrev_b32 {v(off16)}, 4, {v(tp)}')
    A('s_lshl_b32 s36, s32, 8\ns_add_u32 s36, s36, s2\ns_mul_i32 s36, s36, 5120')
    A('s_bfe_u32 s48, s3, 0x10001\ns_and_b32 s49, s3, 1\ns_mul_i32 s50, s49, 192')
    A(f'v_add_u32 {v(tp)}, s50, {v(lane)}\nv_lshlrev_b32 {v(og)}, 4, {v(tp)}')
    A(f'v_lshrrev_b32 {v(c16)}, 2, {v(tp)}\nv_lshlrev_b32 {v(c16)}, 4, {v(c16)}')
    A('s_lshl_b32 s37, s48, 8\ns_add_u32 s37, s37, s2\ns_lshr_b32 s39, s37, 5\ns_lshl_b32 s39, s39, 7\ns_mul_i32 s37, s37, 5120')
    A(f's_add_u32 s38, s37, {L.SZ_PART1}\ns_mul_i32 s34, s2, {2*L.GP}')
    A('s_waitcnt lgkmcnt(0)')
    srd(A, 20, 6, L.OFF_P, L.SZ_A); srd(A, 24, 6, L.OFF_PART, L.SZ_PART)
    srd(A, 28, 8, 0, 1280); srd(A, 12, 4, 0, XB); srd(A, 16, 10, 0, XB)
    def two(fn):
        fn(0)
        _u[0] += 1; lb = f'one{_u[0]}'
        A(f's_cmp_lt_u32 s3, 6\ns_cbranch_scc1 {lb}')
        fn(1)
        A.label(lb)
    def ld_xb(n):
        A(f'buffer_load_dwordx4 {v(xx+4*n,4)}, {v(off16)}, s[12:15], s36 offen offset:{2048*n}')
    two(ld_xb)
    for n in range(3): A(f'buffer_load_dwordx4 {v(bb+4*n,4)}, {v(c16)}, s[28:31], 0 offen offset:{256*n}')
    A(f'v_lshrrev_b32 {v(g)}, 4, {v(lane)}\nv_and_b32 {v(j)}, 15, v0')
    l16 = V()
    A(f'v_lshlrev_b32 {v(l16)}, 4, {v(lane)}\nv_add_u32 {v(l16)}, {K3_CT}, {v(l16)}')
    mk = V.mark()
    st, th = V(), V(); cs = V(4, 4); sn = V(4, 4); o1 = V(4, 4); o2 = V(4, 4)
    A('s_and_b32 s40, s3, 1\ns_lshl_b32 s40, s40, 4\ns_lshr_b32 s41, s3, 1')
    A(f's_cmp_eq_u32 s41, 1\ns_cselect_b32 s42, 16, 0\ns_cselect_b32 s43, 0x80000000, 0')
    A(f's_mov_b32 s44, {fh(1/32)}\ns_cmp_eq_u32 s41, 2\ns_cselect_b32 s44, {fh(1/640)}, s44\ns_cmp_eq_u32 s41, 3\ns_cselect_b32 s44, {fh(1/20)}, s44')
    A(f'v_add_u32 {v(t0)}, s40, {v(j)}\nv_cvt_f32_u32 {v(st)}, {v(t0)}\nv_mul_f32 {v(st)}, s44, {v(st)}')
    A(f'v_lshl_add_u32 {v(t0)}, {v(g)}, 2, s42\nv_cvt_f32_u32 {v(th)}, {v(t0)}\nv_mul_f32 {v(th)}, {v(th)}, {v(st)}')
    for c in range(4):
        A(f'v_cos_f32 {v(cs+c)}, {v(th)}\nv_sin_f32 {v(sn+c)}, {v(th)}')
        if c < 3: A(f'v_add_f32 {v(th)}, {v(th)}, {v(st)}')
    A(f's_lshl_b32 s45, s3, 11\nv_add_u32 {v(t1)}, s45, {v(l16)}')
    A('s_cmp_eq_u32 s41, 2\ns_cbranch_scc1 k3_ctw')
    for c in range(4):
        A(f'v_cvt_pk_bf16_f32 {v(o1+c)}, {v(cs+c)}, -{v(sn+c)}\nv_cvt_pk_bf16_f32 {v(o2+c)}, {v(sn+c)}, {v(cs+c)}')
    for c in range(4): A(f'v_xor_b32 {v(o1+c)}, s43, {v(o1+c)}\nv_xor_b32 {v(o2+c)}, s43, {v(o2+c)}')
    A('s_cmp_eq_u32 s3, 7\ns_cselect_b32 s45, 1024, 0')
    A(f'v_subrev_u32 {v(t1)}, s45, {v(t1)}')
    A(f'ds_write_b128 {v(t1)}, {v(o1,4)}')
    A('s_cmp_ge_u32 s3, 4\ns_cbranch_scc1 k3_g')
    A(f'ds_write_b128 {v(t1)}, {v(o2,4)} offset:1024')
    A('s_branch k3_g')
    A.label('k3_ctw')
    for r in range(4):
        A(f'v_add_u32 {v(th)}, {r}, {v(t0)}')
        A(f'v_cmp_gt_u32 vcc, 10, {v(th)}')
        A(f'v_cndmask_b32 {v(st)}, 0, 2.0, vcc')
        if r in (0, 2):
            A(f'v_cmp_eq_u32 vcc, {5*r}, {v(th)}')
            A(f'v_cndmask_b32 {v(st)}, {v(st)}, 1.0, vcc')
        A(f'v_mul_f32 {v(cs+r)}, {v(cs+r)}, {v(st)}\nv_mul_f32 {v(sn+r)}, {v(sn+r)}, {v(st)}')
    A(f'ds_write_b128 {v(t1)}, {v(cs,4)}\nds_write_b128 {v(t1)}, {v(sn,4)} offset:1024')
    V.reset(mk)
    A.label('k3_g')
    gaddr, pw, ra, rg = V(), V(), V(), V(); a0 = V(4)
    kk = V(2, 2); y = V(8, 4); gp = V(4, 4); tt = V(32, 4); t2_ = tt + 8
    A(f'v_and_b32 {v(t1)}, 3, {v(tp)}')
    A(f'v_mul_u32_u24 {v(t1)}, 1280, {v(t1)}')
    A(f's_mul_i32 s40, s48, 5120\ns_add_u32 s40, s40, {K3_G}')
    A(f'v_add3_u32 {v(gaddr)}, {v(c16)}, {v(t1)}, s40')
    A(f's_mul_i32 s40, s32, 5120\ns_add_u32 s40, s40, {K3_G}')
    A(f'v_min_u32 {v(t0)}, 10, {v(j)}\nv_lshlrev_b32 {v(t0)}, 4, {v(t0)}')
    A(f'v_mul_u32_u24 {v(t1)}, 1280, {v(g)}\nv_add_u32 {v(t0)}, {v(t0)}, {v(t1)}')
    A(f's_and_b32 s41, s3, 3\ns_lshl_b32 s41, s41, 2\ns_add_u32 s41, s41, {K3_PL}\ns_add_u32 s42, s41, 4160')
    A(f'v_add_u32 {v(a0)}, s41, {v(t0)}\nv_sub_u32 {v(a0+2)}, s42, {v(t0)}')
    A(f'v_add_u32 {v(a0+1)}, {L.GP}, {v(a0)}\nv_add_u32 {v(a0+3)}, {L.GP}, {v(a0+2)}')
    A(f'v_mul_u32_u24 {v(pw)}, 144, {v(j)}\nv_lshl_add_u32 {v(pw)}, {v(g)}, 4, {v(pw)}')
    A(f's_mul_i32 s41, s3, 2880\nv_add_u32 {v(pw)}, s41, {v(pw)}')
    A(f'v_lshrrev_b32 {v(t0)}, 2, v0\nv_lshlrev_b32 {v(t0)}, 4, {v(t0)}\nv_lshl_add_u32 {v(ra)}, v0, 5, {v(t0)}')
    A(f'v_add_u32 {v(rg)}, s40, {v(off16)}')
    SC = 2048.0 * 640.0
    A(f'v_mov_b32 {v(kk)}, {fh(-LOG2E)}\nv_mov_b32 {v(kk+1)}, {fh(SC)}')
    A(f'v_cmp_gt_u32 s[46:47], 4, {v(j)}')
    lw = V(2, 2)
    A(f'v_mov_b32 {v(lw)}, {K3_PL+11264}\nv_mov_b32 {v(lw+1)}, 0')
    A(f'ds_write_b32 {v(lw)}, {v(lw+1)}')
    XU = V(16, 4)
    A('s_waitcnt lgkmcnt(0)\ns_barrier')
    A.stamp(1)
    def pre(n):
        for i in range(4): unpack(A, XU + 8 * n + 2 * i, XU + 8 * n + 2 * i + 1, xx + 4 * n + i)
    pd = V(16, 4); B1 = V(32, 4); TW = V(16, 4); B2 = V(8, 4)
    A('s_cmp_ge_u32 s3, 4\ns_cbranch_scc1 k3_g2')
    for n in range(14): A(f'ds_read_b128 {v(B1+4*n,4)}, {v(l16)} offset:{1024*n}')
    A('s_cmp_lg_u32 s3, 0\ns_cbranch_scc1 k3_wait')
    poll(A, 0, (1 << 41) - 1, tt, L.FL_P, wide=True)
    A(f'v_lshlrev_b32 {v(t0)}, 4, {v(lane)}')
    for n in range(11):
        if n % 4 == 0: A(f's_mov_b32 m0, {K3_PL+1024*n}')
        if n == 10: A('s_mov_b64 exec, 0xffff')
        A(f'buffer_load_dwordx4 {v(t0)}, s[20:23], s34 offen offset:{1024*(n%4)} sc1 lds')
        if n % 4 == 3: A('s_add_u32 s34, s34, 4096')
    A('s_mov_b64 exec, -1')
    A(f'v_mov_b32 {v(lw+1)}, 1')
    A('s_waitcnt vmcnt(0)')
    A(f'ds_write_b32 {v(lw)}, {v(lw+1)}')
    A('s_branch k3_go')
    A.label('k3_wait')
    A('s_sleep 1')
    A(f'ds_read_b32 {v(lw+1)}, {v(lw)}')
    A('s_waitcnt lgkmcnt(0)')
    A(f'v_readfirstlane_b32 s41, {v(lw+1)}')
    A('s_cmp_eq_u32 s41, 0\ns_cbranch_scc1 k3_wait')
    A.label('k3_go')
    A('s_waitcnt lgkmcnt(0)')
    A.stamp(2)
    def b1(T, q, part): return B1 + ((q * 2 + T) * 2 + part) * 4
    D = tt; U = pd; E = B1; tq = gp
    for q in range(2):
        for hf in range(2):
            a_ = v(a0 + 2 * q + hf); o = (0, 80, 160, 240) if q == 0 else (240, 160, 80, 0)
            A(f'ds_read2_b32 {v(pd+8*hf+4*q,2)}, {a_} offset0:{o[0]} offset1:{o[1]}\nds_read2_b32 {v(pd+8*hf+4*q+2,2)}, {a_} offset0:{o[2]} offset1:{o[3]}')
    for q in range(2):
        for hf in range(2):
            A(f's_waitcnt lgkmcnt({6-4*q-2*hf})')
            for T in range(2):
                for part in range(2):
                    d = D + 16 * hf + (T * 2 + part) * 4
                    A(f'v_mfma_f32_16x16x32_bf16 {v(d,4)}, {v(pd+8*hf+4*q,4)}, {v(b1(T,q,part),4)}, {v(d,4) if q else 0}')
    for i in range(0, 16, 2):
        A(f'v_pk_add_f32 {v(y+(i&6),2)}, {v(D+i,2)}, {v(D+16+i,2)}')
        A(f'v_pk_add_f32 {v(D+16+i,2)}, {v(D+i,2)}, {v(D+16+i,2)} neg_lo:[0,1] neg_hi:[0,1]')
        if (i & 6) == 6:
            T = i >> 3
            for hb, re in ((0, y), (1, D + 16 + 8 * T)):
                im = re + 4; c_ = TW + 8 * T; s_ = c_ + 4
                for r in (0, 2): A(f'v_pk_mul_f32 {v(tq+r,2)}, {v(im+r,2)}, {v(s_+r,2)}')
                for r in (0, 2): A(f'v_pk_mul_f32 {v(im+r,2)}, {v(im+r,2)}, {v(c_+r,2)}')
                for r in (0, 2): A(f'v_pk_fma_f32 {v(tq+r,2)}, {v(re+r,2)}, {v(c_+r,2)}, {v(tq+r,2)} neg_lo:[0,0,1] neg_hi:[0,0,1]')
                for r in (0, 2): A(f'v_pk_fma_f32 {v(im+r,2)}, {v(re+r,2)}, {v(s_+r,2)}, {v(im+r,2)}')
                for r in range(4): A(f'v_cvt_pk_bf16_f32 {v(U+8*hb+4*T+r)}, {v(tq+r)}, {v(im+r)}')
    for T1 in range(2):
        for hb in range(2):
            for T in range(2):
                A(f'v_mfma_f32_16x16x32_bf16 {v(E+((T1*2+hb)*2+T)*4,4)}, {v(U+8*hb+4*T,4)}, {v(B2+4*T1,4)}, 0')
    for T1 in range(2):
        if T1: A('s_mov_b64 exec, s[46:47]')
        for hb in range(2):
            for T in range(2): A(f'ds_write_b128 {v(pw)}, {v(E+((T1*2+hb)*2+T)*4,4)} offset:{11520*hb+2304*T1+64*T}')
    A('s_mov_b64 exec, -1')
    A('s_branch k3_fin')
    A.label('k3_g2')
    Y = B1
    poll(A, 's39', 0x3ff, tt + 28, L.FL_Q)
    A.stamp(2)
    for n in (2, 0, 1):
        if n == 2: A('s_cmp_eq_u32 s49, 1\ns_cbranch_scc1 k3_l2')
        A(f'buffer_load_dwordx4 {v(pt+8*n,4)}, {v(og)}, s[24:27], s37 offen offset:{1024*n} sc1')
        A(f'buffer_load_dwordx4 {v(pt+8*n+4,4)}, {v(og)}, s[24:27], s38 offen offset:{1024*n} sc1')
        if n == 2: A.label('k3_l2')
    for i in range(12): unpack(A, Y + 2 * i, Y + 2 * i + 1, bb + i)
    for n in (2, 0, 1):
        y_ = Y + 8 * n
        if n == 2: A('s_cbranch_scc1 k3_c2')
        if n == 0: A.label('k3_c2')
        A(f's_waitcnt vmcnt({[2, 0, 4][n]})')
        for i in range(4): unpack(A, t2_ + 2 * i, t2_ + 2 * i + 1, pt + 8 * n + i); unpack(A, tt + 2 * i, tt + 2 * i + 1, pt + 8 * n + 4 + i)
        for i in range(4): A(f'v_pk_add_f32 {v(y_+2*i,2)}, {v(y_+2*i,2)}, {v(t2_+2*i,2)}')
        for i in range(4): A(f'v_pk_add_f32 {v(y_+2*i,2)}, {v(y_+2*i,2)}, {v(tt+2*i,2)}')
        for i in range(4): A(f'v_pk_mul_f32 {v(tt+2*i,2)}, {v(y_+2*i,2)}, {v(kk,2)} op_sel_hi:[1,0]')
        for i in range(8): A(f'v_exp_f32 {v(tt+i)}, {v(tt+i)}')
        for i in range(4): A(f'v_pk_fma_f32 {v(tt+2*i,2)}, {v(tt+2*i,2)}, {v(kk,2)}, {v(kk,2)} op_sel:[0,1,1] op_sel_hi:[1,1,1]')
        for i in range(8): A(f'v_rcp_f32 {v(tt+i)}, {v(tt+i)}')
        for i in range(4): A(f'v_pk_mul_f32 {v(y_+2*i,2)}, {v(y_+2*i,2)}, {v(tt+2*i,2)}')
        for i in range(4): A(f'v_cvt_pk_bf16_f32 {v(bb+4*n+i)}, {v(y_+2*i)}, {v(y_+2*i+1)}')
        A(f'ds_write_b128 {v(gaddr)}, {v(bb+4*n,4)} offset:{256*n}')
    A.label('k3_fin')
    A('s_waitcnt vmcnt(0)')
    two(pre)
    A.stamp(5)
    A('s_waitcnt lgkmcnt(0)\ns_barrier')
    A.stamp(6)
    def rd(n):
        A(f'ds_read_b128 {v(xx+4*n,4)}, {v(rg)} offset:{2048*n}')
        A(f'ds_read_b128 {v(pt+8*n,4)}, {v(ra)} offset:{4608*n}\nds_read_b128 {v(pt+8*n+4,4)}, {v(ra)} offset:{4608*n+16}')
    two(rd)
    A('s_waitcnt lgkmcnt(0)')
    def fin(n):
        for i in range(4): unpack(A, tt + 2 * i, tt + 2 * i + 1, xx + 4 * n + i)
        for i in range(4): A(f'v_pk_fma_f32 {v(XU+8*n+2*i,2)}, {v(pt+8*n+2*i,2)}, {v(tt+2*i,2)}, {v(XU+8*n+2*i,2)}')
        for i in range(4): A(f'v_cvt_pk_bf16_f32 {v(bb+4*n+i)}, {v(XU+8*n+2*i)}, {v(XU+8*n+2*i+1)}')
        A(f'buffer_store_dwordx4 {v(bb+4*n,4)}, {v(off16)}, s[16:19], s36 offen offset:{2048*n} sc1')
    two(fin)
    A.stamp(7)
    if A.prof: A('s_waitcnt vmcnt(0)')
    A.flush(2, 8)
    A.label('k_end')
    A('s_endpgm')
    assert B2 == TW + 16
    return V.hi

def main(out, opts):
    from gen_k1 import gen_k1, K1_LDS
    from gen_k2 import gen_k2
    A = Asm()
    if 'prof' in opts: A.prof = True
    n = [gen_k1(A), gen_k2(A), gen_k3(A)]
    print('vgprs', n, file=sys.stderr)
    assert max(n) <= 250
    body = A.finalize()
    txt = '; generated by dev/f/gen.py (own generator)\n' + f'; @launch grid=(256,1,1) block=(512,1,1) lds={K1_LDS}\n'
    txt += '.amdgcn_target "amdgcn-amd-amdhsa--gfx950"\n.text\n.p2align 8\ntext_begin:\n' + body + '.p2align 8\ntext_end:\n'
    txt += '.section .rodata,"a"\n.p2align 6\n' + desc(NAME + '_kernel', 256)
    open(out, 'w').write(txt)

if __name__ == '__main__':
    import gen
    gen.main(sys.argv[1], sys.argv[2:])
```
